```python
import torch

def _softmax(x, axis=-1):
    return torch.softmax(x, dim=axis)
def _gelu(x):
    return torch.nn.functional.gelu(x, approximate="tanh")
def _silu(x):
    return torch.nn.functional.silu(x)
def _sigmoid(x):
    return torch.sigmoid(x)
def _layernorm(x, axis=-1, eps=1e-5):
    m = x.mean(dim=axis, keepdim=True)
    v = x.var(dim=axis, keepdim=True, unbiased=False)
    return (x - m) / torch.sqrt(v + eps)
def _scatter_add(tgt, idx, src, axis=0):
    return tgt.clone().index_add_(axis, idx, src)
def _segment_sum(src, seg, n):
    out = torch.zeros((n,) + src.shape[1:], dtype=src.dtype)
    return out.index_add_(0, seg, src)
def _pad(x, pw):
    flat = tuple(v for pair in reversed(pw) for v in pair)
    return torch.nn.functional.pad(x, flat)

kernel_name = 'interleave_layers__grouped_kv_mqa__glu_gated_geglu__prompt'

def setup_inputs():

    _w = (lambda a: (lambda t: t.to(torch.bfloat16) if t.is_floating_point() else t)(torch.as_tensor(a)))
    def _A_setup():
        B, S, D, H = 1, 2048, 640, 32
        Dh = D // H
        return {
            "x": _w((lambda *s: torch.randn(*s, dtype=torch.bfloat16) * 0.05)(B, S, D)),
            "wq": _w((lambda *s: torch.randn(*s, dtype=torch.bfloat16) * 0.05)(D, H * Dh)),
            "wk": _w((lambda *s: torch.randn(*s, dtype=torch.bfloat16) * 0.05)(D, Dh)),
            "wv": _w((lambda *s: torch.randn(*s, dtype=torch.bfloat16) * 0.05)(D, Dh)),
            "wo": _w((lambda *s: torch.randn(*s, dtype=torch.bfloat16) * 0.05)(H * Dh, D)),
        }
    _A_in = _A_setup()

    def _B_setup():
        B, S, Dm, Df = 1, 2048, 640, 1728
        return {
            "x": _w((lambda *s: torch.randn(*s, dtype=torch.bfloat16) * 0.05)(B, S, Dm)),
            "w_gate": _w((lambda *s: torch.randn(*s, dtype=torch.bfloat16) * 0.8)(Dm, Df) * (Dm ** -0.5)),
            "w_up": _w((lambda *s: torch.randn(*s, dtype=torch.bfloat16) * 0.8)(Dm, Df) * (Dm ** -0.5)),
            "w_down": _w((lambda *s: torch.randn(*s, dtype=torch.bfloat16) * 0.8)(Df, Dm) * (Df ** -0.5)),
        }
    _B_in = _B_setup()

    return {
        "A_x": _A_in["x"],
        "A_wq": _A_in["wq"],
        "A_wk": _A_in["wk"],
        "A_wv": _A_in["wv"],
        "A_wo": _A_in["wo"],
        "B_x": _B_in["x"],
        "B_w_gate": _B_in["w_gate"],
        "B_w_up": _B_in["w_up"],
        "B_w_down": _B_in["w_down"],
    }

def reference(A_x, A_wq, A_wk, A_wv, A_wo, B_x, B_w_gate, B_w_up, B_w_down):
    def _A_ref(x, wq, wk, wv, wo):
        B, S, D = x.shape
        H = 32
        Dh = D // H
        q = (lambda x, *d: x.permute(*d))((x @ wq).reshape(B, S, H, Dh), 0, 2, 1, 3)
        k = x @ wk
        v = x @ wv
        scores = torch.einsum("bhqd,bkd->bhqk", q, k) * (Dh ** -0.5)
        p = _softmax(scores, axis=-1)
        o = torch.einsum("bhqk,bkd->bhqd", p, v)
        return (lambda x, *d: x.permute(*d))(o, 0, 2, 1, 3).reshape(B, S, H * Dh) @ wo

    def _B_ref(x, w_gate, w_up, w_down):
        g = torch.einsum("bsd,df->bsf", x, w_gate)
        u = torch.einsum("bsd,df->bsf", x, w_up)
        h = _gelu(g) * u
        return torch.einsum("bsf,fd->bsd", h, w_down)

    x = A_x
    x = x + _A_ref(_layernorm(x, axis=-1), A_wq, A_wk, A_wv, A_wo)
    x = x + _B_ref(_layernorm(x, axis=-1), B_w_gate, B_w_up, B_w_down)
    x = x + _A_ref(_layernorm(x, axis=-1), A_wq, A_wk, A_wv, A_wo)
    x = x + _B_ref(_layernorm(x, axis=-1), B_w_gate, B_w_up, B_w_down)
    return x
```

```python
import re

_REG_RE = re.compile(r'\b([vas])\[(\d+):(\d+)\]|\b([vas])(\d+)\b|\b(vcc|exec|m0)\b')

def regs_of(text):
    out = []
    for m in _REG_RE.finditer(text):
        if m.group(1):
            c = m.group(1)
            out += [(c, i) for i in range(int(m.group(2)), int(m.group(3)) + 1)]
        elif m.group(4):
            out.append((m.group(4), int(m.group(5))))
        else:
            out.append((m.group(6), 0))
    return out

TRANS = ('v_exp_', 'v_log_', 'v_rcp_', 'v_rsq_', 'v_sqrt_', 'v_sin_', 'v_cos_')

class Ins:
    __slots__ = ('text', 'op', 'kind', 'dst', 'src', 'passes', 'srcA', 'srcB', 'srcC', 'line_comment')
    def __init__(self, text):
        self.text = text
        body = text.split(';')[0].strip()
        parts = body.split(None, 1)
        self.op = parts[0]
        ops = []
        if len(parts) > 1:
            depth = 0; cur = ''
            for ch in parts[1]:
                if ch == '[': depth += 1
                if ch == ']': depth -= 1
                if ch == ',' and depth == 0:
                    ops.append(cur.strip()); cur = ''
                else:
                    cur += ch
            ops.append(cur.strip())
        op = self.op
        self.passes = 0
        self.srcA = self.srcB = self.srcC = []
        R = regs_of
        if op.startswith('v_mfma'):
            self.kind = 'mfma'
            self.passes = 8 if '32x32x16' in op else 4
            self.dst = R(ops[0]); self.srcA = R(ops[1]); self.srcB = R(ops[2]); self.srcC = R(ops[3])
            self.src = self.srcA + self.srcB + self.srcC
        elif op.startswith('v_'):
            self.kind = 'valu'
            if op.startswith('v_cmp'):
                self.dst = R(ops[0]); self.src = [r for o in ops[1:] for r in R(o)]
            elif op.startswith('v_permlane'):
                self.dst = R(ops[0]) + R(ops[1]); self.src = R(ops[0]) + R(ops[1])
            elif op.startswith(('v_add_co', 'v_sub_co', 'v_addc_co', 'v_subb_co')):
                self.dst = R(ops[0]) + R(ops[1]); self.src = [r for o in ops[2:] for r in R(o)]
                if op.startswith(('v_addc', 'v_subb')): self.src += R(ops[1])
            else:
                self.dst = R(ops[0]); self.src = [r for o in ops[1:] for r in R(o)]
                if op.startswith(('v_fmac', 'v_pk_fmac', 'v_mac')): self.src += R(ops[0])
                if op.startswith('v_cndmask') and len(ops) == 3: self.src += [('vcc', 0)]
        elif op.startswith('ds_'):
            self.kind = 'ds'
            if op.startswith(('ds_read', 'ds_bpermute', 'ds_permute', 'ds_swizzle')):
                self.dst = R(ops[0]); self.src = [r for o in ops[1:] for r in R(o)]
            else:
                self.dst = []; self.src = [r for o in ops for r in R(o)]
        elif op.startswith(('buffer_load', 'global_load')):
            self.kind = 'vmem'
            if ' lds' in (' ' + text.split(';')[0]) or op.startswith('global_load_lds'):
                self.dst = []; self.src = [r for o in ops for r in R(o)] + [('m0', 0)]
                self.kind = 'ldsdma'
            else:
                self.dst = R(ops[0]); self.src = [r for o in ops[1:] for r in R(o)]
        elif op.startswith(('buffer_store', 'global_store', 'buffer_atomic', 'global_atomic')):
            self.kind = 'vmem'
            self.dst = []; self.src = [r for o in ops for r in R(o)]
        elif op.startswith('s_'):
            self.kind = 'salu'
            if op in ('s_nop', 's_waitcnt', 's_barrier', 's_endpgm', 's_setprio', 's_branch') or op.startswith(('s_cbranch', 's_cmp')):
                self.dst = []; self.src = [r for o in ops for r in R(o)] if op.startswith('s_cmp') else []
            else:
                self.dst = R(ops[0]); self.src = [r for o in ops[1:] for r in R(o)]
        else:
            self.kind = 'other'; self.dst = []; self.src = []

def is_trans(ins):
    return ins.kind == 'valu' and ins.op.startswith(TRANS)

def required_gap(prod, cons):
    need = 0
    pd = set(prod.dst); ps_ = set(prod.src)
    cd = set(cons.dst); cs = set(cons.src)
    if prod.kind == 'mfma':
        n8 = prod.passes == 8
        if cons.kind == 'mfma':
            if pd & set(cons.srcA + cons.srcB): need = max(need, 12 if n8 else 8)
            if pd & set(cons.srcC):
                same = (prod.dst == cons.srcC and prod.passes == cons.passes)
                need = max(need, 0 if same else (10 if n8 else 6))
            if pd & cd and not (pd & set(cons.srcC)):
                need = max(need, 12 if n8 else 8)
        elif cons.kind in ('valu', 'ds', 'vmem', 'ldsdma'):
            if pd & (cs | cd): need = max(need, 12 if n8 else 8)
        if cons.kind == 'valu' and set(prod.srcC) & cd:
            need = max(need, 7 if n8 else 3)
    elif prod.kind == 'valu':
        vw = {r for r in pd if r[0] in 'va'}
        sw = {r for r in pd if r[0] in ('s', 'vcc', 'exec')}
        if cons.kind == 'mfma' and vw & cs: need = max(need, 2)
        if is_trans(prod) and cons.kind == 'valu' and not is_trans(cons) and (vw & (cs | cd)): need = max(need, 1)
        if cons.kind == 'valu':
            if cons.op.startswith(('v_readfirstlane', 'v_readlane')) and vw & cs: need = max(need, 1)
            if (cons.op.startswith('v_permlane') or 'dpp' in cons.text.split(';')[0]) and vw & cs: need = max(need, 2)
            if sw & cs: need = max(need, 2)
        if cons.kind in ('vmem', 'ldsdma') and sw & cs: need = max(need, 5)
        if cons.kind == 'salu' and sw & cs: need = max(need, 1)
    elif prod.kind == 'salu':
        if ('m0', 0) in pd and cons.kind == 'ldsdma': need = max(need, 1)
    elif prod.kind == 'vmem':
        if prod.op.startswith(('buffer_store_dwordx3', 'buffer_store_dwordx4', 'global_store_dwordx3', 'global_store_dwordx4')):
            data = set(regs_of(prod.text.split(';')[0].split(None, 1)[1].split(',')[0])) if prod.op.startswith('buffer') else \
                   set(regs_of(prod.text.split(';')[0].split(None, 1)[1].split(',')[1]))
            if data & cd: need = max(need, 2 if cons.kind == 'valu' else 1)
    return need

def states_of(ins):
    if ins.op == 's_nop':
        return int(ins.text.split(';')[0].split()[1], 0) + 1
    return 1

class Kernel:
    def __init__(self, name):
        self.name = name
        self.items = []
        self.max_v = -1; self.max_a = -1; self.max_s = -1
    def I(self, text):
        ins = Ins(text)
        self.items.append(('i', ins))
        for r in ins.dst + ins.src:
            if r[0] == 'v': self.max_v = max(self.max_v, r[1])
            if r[0] == 'a': self.max_a = max(self.max_a, r[1])
            if r[0] == 's': self.max_s = max(self.max_s, r[1])
        return ins
    def L(self, label): self.items.append(('l', label))
    def C(self, c): self.items.append(('c', c))

    def hazard_pass(self, window=24):
        out = []
        def recent(n_items):
            res = []; dist = 0
            for it in reversed(n_items):
                if it[0] != 'i': continue
                res.append((it[1], dist))
                dist += states_of(it[1])
                if dist > window: break
            return res
        def fix(cons, prefix_items):
            need_extra = 0
            for prod, between in recent(prefix_items):
                g = required_gap(prod, cons)
                if g > between: need_extra = max(need_extra, g - between)
            return need_extra
        labels = {}
        for it in self.items:
            if it[0] == 'l':
                labels[it[1]] = len(out); out.append(it); continue
            if it[0] == 'c':
                out.append(it); continue
            ins = it[1]
            extra = fix(ins, out)
            while extra > 0:
                n = min(extra, 16)
                out.append(('i', Ins(f's_nop {n-1}'))); extra -= n
            out.append(it)
            if ins.op.startswith(('s_cbranch', 's_branch')):
                tgt = ins.text.split(';')[0].split()[1]
                if tgt in labels:
                    t = labels[tgt]
                    j = t; dist = 0
                    while j < len(out) and dist <= window:
                        itj = out[j]
                        if itj[0] == 'i':
                            c = itj[1]
                            prefix = out[:] + [x for x in out[t:j]]
                            e = fix(c, prefix)
                            if e > 0:
                                k = j
                                while e > 0:
                                    n = min(e, 16)
                                    out.insert(k, ('i', Ins(f's_nop {n-1}'))); e -= n
                                    j += 1
                            dist += states_of(c)
                        j += 1
        self.items = out

    def text(self):
        L = []
        for it in self.items:
            if it[0] == 'i': L.append('  ' + it[1].text)
            elif it[0] == 'l': L.append(it[1] + ':')
            else: L.append('  ; ' + it[1])
        return '\n'.join(L)

def round_up(x, m): return (x + m - 1) // m * m

def build_file(kernels, launches, header_comment=''):
    L = []
    for c in header_comment.strip('\n').split('\n'):
        if c: L.append('; ' + c)
    for (k, g, b, lds) in launches:
        L.append(f'; @launch kernel={k} grid=({g},1,1) block=({b},1,1) lds={lds}')
    L.append('.amdgcn_target "amdgcn-amd-amdhsa--gfx950"')
    L.append('.text')
    for k in kernels:
        L += [f'.globl {k.name}', '.p2align 8', f'.type {k.name},@function', f'{k.name}:']
        L.append(k.text())
    L.append('.section .rodata,"a"')
    for k in kernels:
        nv = k.max_v + 1
        acc = round_up(max(nv, 4), 4)
        total = acc + (k.max_a + 1) if k.max_a >= 0 else nv
        ns = max(k.max_s + 1, 8)
        L += ['.p2align 6', f'.amdhsa_kernel {k.name}',
              f'  .amdhsa_next_free_vgpr {max(total, 8)}', f'  .amdhsa_next_free_sgpr {ns}',
              f'  .amdhsa_accum_offset {acc}', '  .amdhsa_group_segment_fixed_size 0', '  .amdhsa_kernarg_size 96',
              '  .amdhsa_user_sgpr_count 2', '  .amdhsa_user_sgpr_kernarg_segment_ptr 1',
              '  .amdhsa_system_sgpr_workgroup_id_x 1', '.end_amdhsa_kernel']
    return '\n'.join(L) + '\n'
```

```python
import sys
sys.path.insert(0, 'tools')
from asmgen import Kernel, build_file

S, D, H, DH, DF = 2048, 640, 32, 20, 1728
KA = dict(x=0, wq=8, wk=16, wv=24, wo=32, bx=40, wg=48, wu=56, wd=64, out=72, dbg=80, ws=88)
WS_Q   = 0x000000
WS_O   = 0x300000
WS_X1  = 0x600000
WS_X2  = 0x900000
WS_KV  = 0xC00000
WS_ST  = 0xD00000
WS_H   = 0x1000000
XBYTES = S * D * 2
HBYTES = S * DF * 2

QSCALE = (DH ** -0.5) * 1.4426950408889634

def f32bits(x):
    import struct
    return struct.unpack('<I', struct.pack('<f', x))[0]

def srd(I, sreg, lo, hi, nbytes):
    I(f's_mov_b32 s{sreg}, s{lo}'); I(f's_mov_b32 s{sreg+1}, s{hi}')
    I(f's_mov_b32 s{sreg+2}, {nbytes}'); I(f's_mov_b32 s{sreg+3}, 0x00020000')

def load_ptr(I, dst, key):
    I(f's_load_dwordx2 s[{dst}:{dst+1}], s[0:1], {KA[key]}')

def ws_ptr(I, dst, wsbase, off):
    I(f's_add_u32 s{dst}, s{wsbase}, {off}'); I(f's_addc_u32 s{dst+1}, s{wsbase+1}, 0')

STAMPS = False
WS_STAMP = 0x8000000
def stamp(k, i):
    if not STAMPS: return
    k.I(f's_memtime s[{64+2*i}:{65+2*i}]')
def stamp_flush(k, n, wsreg):
    if not STAMPS: return
    I = k.I
    I('s_waitcnt lgkmcnt(0)')
    I(f's_add_u32 s100, s{wsreg}, {WS_STAMP}'); I(f's_addc_u32 s101, s{wsreg+1}, 0')
    I('s_mov_b32 s96, s100'); I('s_mov_b32 s97, s101'); I('s_mov_b32 s98, 0x1000000'); I('s_mov_b32 s99, 0x00020000')
    I('v_lshrrev_b32 v200, 6, v0'); I('v_lshl_add_u32 v200, s2, 3, v200')
    I('v_lshlrev_b32 v200, 6, v200')
    for i in range(n):
        I(f'v_mov_b32 v201, s{64+2*i}')
        I(f'buffer_store_dword v201, v200, s[96:99], 0 offen offset:{4*i}')

T1_NS = 4
T1_XB, T1_WB = 4096, 5120
T1_STAGE = T1_XB + T1_WB
T1_WAVE = T1_NS * T1_STAGE
T1_LDS = 4 * T1_WAVE


def xlane_sum(I, v, tmp):
    I(f'v_mov_b32 v{tmp}, v{v}')
    I(f'v_permlane16_swap_b32 v{v}, v{tmp}')
    I(f'v_add_f32 v{v}, v{v}, v{tmp}')
    I(f'v_mov_b32 v{tmp}, v{v}')
    I(f'v_permlane32_swap_b32 v{v}, v{tmp}')
    I(f'v_add_f32 v{v}, v{v}, v{tmp}')

def round_bf16(I, v, tmp):
    I(f'v_cvt_pk_bf16_f32 v{tmp}, v{v}, v{v}')
    I(f'v_lshlrev_b32 v{v}, 16, v{tmp}')

def ln_scalars(I, vsum, vsq, vmean, vrden, tmp):
    I(f'v_mul_f32 v{vmean}, {f32bits(1.0/D):#x}, v{vsum}')
    I(f'v_mul_f32 v{tmp}, {f32bits(1.0/D):#x}, v{vsq}')
    I(f'v_fma_f32 v{tmp}, -v{vmean}, v{vmean}, v{tmp}')
    I(f'v_max_f32 v{tmp}, 0, v{tmp}')
    round_bf16(I, tmp, tmp + 1)
    I(f'v_add_f32 v{tmp}, {f32bits(1e-5):#x}, v{tmp}')
    round_bf16(I, tmp, tmp + 1)
    I(f'v_sqrt_f32 v{tmp}, v{tmp}')
    round_bf16(I, tmp, tmp + 1)
    I(f'v_rcp_f32 v{vrden}, v{tmp}')
    round_bf16(I, vmean, tmp + 1)

def t1_kernel(name, mode, layer):
    k = Kernel(name); I = k.I; C = k.C
    last_layer = (layer == 1)
    if mode == 'g1':   K = D;  NCH = 9
    elif mode == 'g2': K = D;  NCH = 8
    else:              K = DF; NCH = 8
    NWG = 32 * NCH
    KS = K // 32
    pitchX = K * 2
    pitchW = D * 2
    sX, sW, sO, sR = 4, 8, 12, 16
    sWAVE, sLDSW, sCNT, sKX, sKW, sLD, sRD, sTMP, sR0, sN0, sCH = 20, 21, 22, 23, 24, 25, 26, 27, 28, 29, 30
    sP = 32
    sW2 = 48
    vLANE = 1
    vXOFF = 2
    vWOFF = 6
    vXRD, vWRD = 11, 12
    vXA, vWA = 13, 14
    vT = 15
    vB = 24
    vA = 40
    vACC = 60
    vST = 140
    vONE = 153
    vRES = 154
    def acc(rt, ft): b = vACC + (rt * 5 + ft) * 4; return f'v[{b}:{b+3}]'
    END = 'L_end_' + name

    I(f's_cmp_ge_u32 s2, {NWG}'); I('s_cbranch_scc1 ' + END)
    stamp(k, 0)
    load_ptr(I, sP, 'ws')
    if mode == 'g1':
        load_ptr(I, sP + 2, 'x'); load_ptr(I, sP + 4, 'wq'); load_ptr(I, sP + 6, 'wk'); load_ptr(I, sP + 8, 'wv')
    elif mode == 'g2':
        load_ptr(I, sP + 2, 'x'); load_ptr(I, sP + 4, 'wo')
    else:
        load_ptr(I, sP + 4, 'wd'); load_ptr(I, sP + 6, 'out')
    I(f'v_lshrrev_b32 v{vT}, 6, v0')
    I(f'v_and_b32 v{vLANE}, 63, v0')
    I(f'v_readfirstlane_b32 s{sWAVE}, v{vT}')
    I(f's_and_b32 s{sR0}, s2, 7'); I(f's_lshr_b32 s{sCH}, s2, 3')
    I(f's_and_b32 s{sTMP}, s{sCH}, 3'); I(f's_lshr_b32 s{sCH}, s{sCH}, 2')
    I(f's_lshl_b32 s{sR0}, s{sR0}, 2'); I(f's_add_u32 s{sR0}, s{sR0}, s{sTMP}')
    I(f's_lshl_b32 s{sR0}, s{sR0}, 6')
    I(f's_mul_i32 s{sN0}, s{sCH}, 80')
    I('s_waitcnt lgkmcnt(0)')
    if mode == 'g1':
        if layer == 0: srd(I, sX, sP + 2, sP + 3, XBYTES)
        else:
            ws_ptr(I, sP + 10, sP, WS_X2); srd(I, sX, sP + 10, sP + 11, XBYTES)
        srd(I, sW, sP + 4, sP + 5, D * D * 2)
        ws_ptr(I, sP + 10, sP, WS_Q); srd(I, sO, sP + 10, sP + 11, XBYTES)
    elif mode == 'g2':
        ws_ptr(I, sP + 10, sP, WS_O); srd(I, sX, sP + 10, sP + 11, XBYTES)
        srd(I, sW, sP + 4, sP + 5, D * D * 2)
        ws_ptr(I, sP + 10, sP, WS_X1); srd(I, sO, sP + 10, sP + 11, XBYTES)
        if layer == 0: srd(I, sR, sP + 2, sP + 3, XBYTES)
        else:
            ws_ptr(I, sP + 10, sP, WS_X2); srd(I, sR, sP + 10, sP + 11, XBYTES)
    else:
        ws_ptr(I, sP + 10, sP, WS_H); srd(I, sX, sP + 10, sP + 11, HBYTES)
        srd(I, sW, sP + 4, sP + 5, DF * D * 2)
        if last_layer: srd(I, sO, sP + 6, sP + 7, XBYTES)
        else:
            ws_ptr(I, sP + 10, sP, WS_X2); srd(I, sO, sP + 10, sP + 11, XBYTES)
        ws_ptr(I, sP + 10, sP, WS_X1); srd(I, sR, sP + 10, sP + 11, XBYTES)
    I(f's_sub_u32 s{sCNT}, {KS + 3}, s{sWAVE}'); I(f's_lshr_b32 s{sCNT}, s{sCNT}, 2')
    I(f's_mul_i32 s{sTMP}, s{sWAVE}, {KS >> 2}')
    I(f's_min_u32 s{sKX}, s{sWAVE}, {KS & 3}'); I(f's_add_u32 s{sTMP}, s{sTMP}, s{sKX}')
    I(f's_lshl_b32 s{sKX}, s{sTMP}, 6')
    I(f's_mul_i32 s{sKW}, s{sTMP}, {32 * pitchW}')
    I(f's_mul_i32 s{sLDSW}, s{sWAVE}, {T1_WAVE}')
    C('X DMA offsets: row = 16j + (lane>>2), piece = (lane&3) ^ ((row>>1)&3)')
    I(f'v_lshrrev_b32 v{vT}, 2, v{vLANE}')
    I(f'v_lshrrev_b32 v{vT+1}, 3, v{vLANE}')
    I(f'v_xor_b32 v{vT+1}, v{vT+1}, v{vLANE}')
    I(f'v_and_b32 v{vT+1}, 3, v{vT+1}')
    I(f'v_add_u32 v{vT}, s{sR0}, v{vT}')
    I(f's_mov_b32 s{sTMP}, {pitchX}')
    I(f'v_mul_lo_u32 v{vT}, v{vT}, s{sTMP}')
    I(f'v_lshl_add_u32 v{vXOFF}, v{vT+1}, 4, v{vT}')
    for j in range(1, 4):
        I(f'v_add_u32 v{vXOFF+j}, {16 * j * pitchX}, v{vXOFF}')
    C('W DMA offsets: q = 64j+lane ; krow = q//10 ; pc = q%10')
    for j in range(5):
        I(f'v_add_u32 v{vT}, {64 * j}, v{vLANE}')
        I(f'v_mul_u32_u24 v{vT+1}, 6554, v{vT}')
        I(f'v_lshrrev_b32 v{vT+1}, 16, v{vT+1}')
        I(f'v_mul_u32_u24 v{vT+2}, 10, v{vT+1}')
        I(f'v_sub_u32 v{vT+2}, v{vT}, v{vT+2}')
        I(f'v_mul_u32_u24 v{vT+1}, {pitchW}, v{vT+1}')
        I(f'v_lshl_add_u32 v{vWOFF+j}, v{vT+2}, 4, v{vT+1}')
    I(f's_lshl_b32 s{sTMP}, s{sN0}, 1')
    for j in range(5):
        I(f'v_add_u32 v{vWOFF+j}, s{sTMP}, v{vWOFF+j}')
    C('B frag: row=l&15, slab=l>>4 -> row*64 + (slab ^ ((row>>1)&3))*16')
    I(f'v_and_b32 v{vT}, 15, v{vLANE}')
    I(f'v_lshrrev_b32 v{vT+1}, 4, v{vLANE}')
    I(f'v_lshrrev_b32 v{vT+2}, 1, v{vT}')
    I(f'v_xor_b32 v{vT+2}, v{vT+2}, v{vT+1}')
    I(f'v_and_b32 v{vT+2}, 3, v{vT+2}')
    I(f'v_lshlrev_b32 v{vT+2}, 4, v{vT+2}')
    I(f'v_lshl_add_u32 v{vXRD}, v{vT}, 6, v{vT+2}')
    I(f'v_add_u32 v{vXRD}, s{sLDSW}, v{vXRD}')
    C('A frag tr read: g=l>>4,i=l&15 -> XB + (8g+(i>>2))*pitch + (i&3)*8')
    I(f'v_lshrrev_b32 v{vT+2}, 2, v{vT}')
    I(f'v_lshl_add_u32 v{vT+2}, v{vT+1}, 3, v{vT+2}')
    I(f'v_mov_b32 v{vT+4}, v{vT+2}')
    I(f'v_mul_u32_u24 v{vT+2}, 160, v{vT+2}')
    I(f'v_and_b32 v{vT+3}, 3, v{vLANE}')
    I(f'v_lshl_add_u32 v{vWRD}, v{vT+3}, 3, v{vT+2}')
    I(f'v_add_u32 v{vWRD}, {T1_XB}, v{vWRD}')
    I(f'v_add_u32 v{vWRD}, s{sLDSW}, v{vWRD}')
    for r in range(80): I(f'v_mov_b32 v{vACC+r}, 0')
    if mode == 'g1':
        for r in range(13): I(f'v_mov_b32 v{vST+r}, 0')
        I(f'v_mov_b32 v{vONE}, 0x3f803f80')
    I(f's_mov_b32 s{sLD}, s{sLDSW}')
    I(f's_mov_b32 s{sRD}, 0')

    def emit_loop(tag, kv):
        nft = 4 if kv else 5
        ftoff = [0, 32, 2048, 2080] if kv else [0, 32, 64, 96, 128]
        second = 4 * 40 if kv else 640
        ndma = 4 + (4 if kv else 5)
        def issue_stage():
            for j in range(4):
                I(f's_add_u32 m0, s{sLD}, {j * 1024}')
                I(f'buffer_load_dwordx4 v{vXOFF+j}, s[{sX}:{sX+3}], s{sKX} offen lds')
            if not kv:
                for j in range(5):
                    I(f's_add_u32 m0, s{sLD}, {T1_XB + j * 1024}')
                    I(f'buffer_load_dwordx4 v{vWOFF+j}, s[{sW}:{sW+3}], s{sKW} offen lds')
                I(f's_add_u32 s{sKW}, s{sKW}, {32 * pitchW}')
            else:
                for m, sr in enumerate((sW, sW2)):
                    for j in range(2):
                        I(f's_add_u32 m0, s{sLD}, {T1_XB + m * 2048 + j * 1024}')
                        I(f'buffer_load_dwordx4 v{vWOFF+j}, s[{sr}:{sr+3}], s{sKW} offen lds')
                I(f's_add_u32 s{sKW}, s{sKW}, 1280')
            I(f's_add_u32 s{sKX}, s{sKX}, 64')
            I(f's_add_u32 s{sLD}, s{sLD}, {T1_STAGE}')
            I(f's_add_u32 s{sTMP}, s{sLDSW}, {T1_WAVE}')
            I(f's_cmp_ge_u32 s{sLD}, s{sTMP}')
            I(f's_cselect_b32 s{sLD}, s{sLDSW}, s{sLD}')
        stamp(k, 1)
        for st in range(T1_NS - 1): issue_stage()
        stamp(k, 2)
        k.L(f'L_loop{tag}_' + name)
        issue_stage()
        I(f's_waitcnt vmcnt({(T1_NS - 1) * ndma})')
        I(f'v_add_u32 v{vXA}, s{sRD}, v{vXRD}')
        I(f'v_add_u32 v{vWA}, s{sRD}, v{vWRD}')
        for rt in range(4):
            I(f'ds_read_b128 v[{vB+4*rt}:{vB+4*rt+3}], v{vXA} offset:{rt*1024}')
        for ft in range(nft):
            I(f'ds_read_b64_tr_b16 v[{vA+4*ft}:{vA+4*ft+1}], v{vWA} offset:{ftoff[ft]}')
            I(f'ds_read_b64_tr_b16 v[{vA+4*ft+2}:{vA+4*ft+3}], v{vWA} offset:{ftoff[ft]+second}')
        I(f's_add_u32 s{sRD}, s{sRD}, {T1_STAGE}')
        I(f's_cmp_ge_u32 s{sRD}, {T1_WAVE}')
        I(f's_cselect_b32 s{sRD}, 0, s{sRD}')
        I('s_waitcnt lgkmcnt(0)')
        for rt in range(4):
            for ft in range(nft):
                I(f'v_mfma_f32_16x16x32_bf16 {acc(rt,ft)}, v[{vA+4*ft}:{vA+4*ft+3}], v[{vB+4*rt}:{vB+4*rt+3}], {acc(rt,ft)}')
        if mode == 'g1':
            for rt in range(4):
                for j in range(4):
                    I(f'v_dot2_f32_bf16 v{vST+rt}, v{vB+4*rt+j}, v{vONE}, v{vST+rt}')
                    I(f'v_dot2_f32_bf16 v{vST+4+rt}, v{vB+4*rt+j}, v{vB+4*rt+j}, v{vST+4+rt}')
            for ft in range(nft):
                for j in range(4):
                    I(f'v_dot2_f32_bf16 v{vST+8+ft}, v{vA+4*ft+j}, v{vONE}, v{vST+8+ft}')
        I(f's_sub_u32 s{sCNT}, s{sCNT}, 1')
        I(f's_cmp_lg_u32 s{sCNT}, 0')
        I(f's_cbranch_scc1 L_loop{tag}_' + name)

    if mode == 'g1':
        I(f's_cmp_eq_u32 s{sCH}, 8'); I(f's_cbranch_scc1 L_kv_' + name)
    if mode in ('g2', 'g4'):
        C('residual loads issued early')
        I(f'v_and_b32 v{vT}, 15, v{vLANE}')
        I(f'v_lshrrev_b32 v{vT+1}, 4, v{vLANE}')
        I(f's_lshl_b32 s{sTMP}, s{sWAVE}, 4'); I(f's_add_u32 s{sTMP}, s{sTMP}, s{sR0}')
        I(f'v_add_u32 v{vT}, s{sTMP}, v{vT}')
        I(f'v_mul_u32_u24 v{vT}, 1280, v{vT}')
        I(f'v_lshl_add_u32 v{vT+1}, v{vT+1}, 3, v{vT}')
        I(f's_lshl_b32 s{sTMP}, s{sN0}, 1')
        I(f'v_add_u32 v{vT+8}, s{sTMP}, v{vT+1}')
        for ft in range(5):
            I(f'buffer_load_dwordx2 v[{vRES+2*ft}:{vRES+2*ft+1}], v{vT+8}, s[{sR}:{sR+3}], 0 offen offset:{ft*32}')
    emit_loop('', False)
    if mode == 'g1':
        I(f's_branch L_red_' + name)
        k.L('L_kv_' + name)
        C('kv chunk: W SRDs = wk, wv ; DMA offsets lane*16 (+1024), tr pitch 40')
        srd(I, sW, sP + 6, sP + 7, D * DH * 2)
        srd(I, sW2, sP + 8, sP + 9, D * DH * 2)
        I(f'v_lshlrev_b32 v{vWOFF}, 4, v{vLANE}')
        I(f'v_add_u32 v{vWOFF+1}, 1024, v{vWOFF}')
        I(f's_mul_i32 s{sTMP}, s{sWAVE}, {KS >> 2}')
        I(f's_mul_i32 s{sKW}, s{sTMP}, 1280')
        I(f'v_mul_u32_u24 v{vT+2}, 40, v{vT+4}')
        I(f'v_lshl_add_u32 v{vWRD}, v{vT+3}, 3, v{vT+2}')
        I(f'v_add_u32 v{vWRD}, {T1_XB}, v{vWRD}')
        I(f'v_add_u32 v{vWRD}, s{sLDSW}, v{vWRD}')
        emit_loop('kv', True)
        k.L('L_red_' + name)
    stamp(k, 3)
    C('reduce: every wave dumps its partial tiles into its own ring area')
    I('s_waitcnt vmcnt(0)')
    I(f'v_lshlrev_b32 v{vT}, 4, v{vLANE}')
    I(f'v_add_u32 v{vT}, s{sLDSW}, v{vT}')
    for t in range(20):
        b = vACC + 4 * t
        I(f'ds_write_b128 v{vT}, v[{b}:{b+3}] offset:{t*1024}')
    if mode == 'g1':
        I(f'v_lshlrev_b32 v{vT+1}, 2, v{vLANE}')
        I(f'v_add_u32 v{vT+1}, s{sLDSW}, v{vT+1}')
        for r in range(13):
            I(f'ds_write_b32 v{vT+1}, v{vST+r} offset:{20480 + r*256}')
    I('s_waitcnt lgkmcnt(0)')
    stamp(k, 4)
    I('s_barrier')
    stamp(k, 5)
    C('wave w gathers row-tile w from the 4 areas')
    I(f'v_lshlrev_b32 v{vT}, 4, v{vLANE}')
    I(f's_mul_i32 s{sTMP}, s{sWAVE}, 5120')
    I(f'v_add_u32 v{vT}, s{sTMP}, v{vT}')
    for u in range(1, 4):
        I(f'v_add_u32 v{vT+u}, {u*T1_WAVE}, v{vT}')
    vF = vACC
    vTMPF = vACC + 20
    for u in range(4):
        dst = vF if u == 0 else vTMPF + (u - 1) * 20
        for ft in range(5):
            I(f'ds_read_b128 v[{dst+4*ft}:{dst+4*ft+3}], v{vT+u} offset:{ft*1024}')
    if mode == 'g1':
        C('stats: sum/sq of row tile w (regs w, 4+w) and colsums (regs 8..12) from 4 areas')
        I(f'v_lshlrev_b32 v{vT+4}, 2, v{vLANE}')
        I(f's_lshl_b32 s{sTMP}, s{sWAVE}, 8')
        I(f'v_add_u32 v{vT+4}, s{sTMP}, v{vT+4}')
        for u in range(4):
            I(f'v_add_u32 v{vT+5}, {u*T1_WAVE + 20480}, v{vT+4}')
            I(f'ds_read_b32 v{vST+u}, v{vT+5}')
            I(f'ds_read_b32 v{vST+4+u}, v{vT+5} offset:1024')
        I(f'v_lshlrev_b32 v{vT+4}, 2, v{vLANE}')
        for u in range(4):
            I(f'v_add_u32 v{vT+5}, {u*T1_WAVE + 20480 + 2048}, v{vT+4}')
            for c in range(5):
                I(f'ds_read_b32 v{vA+5*u+c}, v{vT+5} offset:{c*256}')
    I('s_waitcnt lgkmcnt(0)')
    for u in range(1, 4):
        for r in range(20):
            I(f'v_add_f32 v{vF+r}, v{vF+r}, v{vTMPF+(u-1)*20+r}')
    k._env = dict(locals())
    stamp(k, 6)
    if mode in ('g2', 'g4'):
        epi_residual(k, mode)
        stamp(k, 7)
        stamp_flush(k, 8, sP)
    else:
        epi_qkv(k)
    k.L(END)
    I('s_endpgm')
    return k

def epi_residual(k, mode):
    e = k._env; I = k.I; C = k.C
    vF, vRES, vT, vLANE, vST = e['vF'], e['vRES'], e['vT'], e['vLANE'], e['vST']
    sO, sCH, sP, sTMP = e['sO'], e['sCH'], e['sP'], e['sTMP']
    vP = e['vTMPF']
    vMK = vP + 20
    I('s_waitcnt vmcnt(0)')
    I(f'v_mov_b32 v{vMK}, 0xffff0000')
    if mode == 'g2':
        I(f'v_mov_b32 v{vST}, 0'); I(f'v_mov_b32 v{vST+1}, 0')
    for ft in range(5):
        for h in range(2):
            r = vRES + 2 * ft + h
            a0, a1 = vF + 4 * ft + 2 * h, vF + 4 * ft + 2 * h + 1
            I(f'v_lshlrev_b32 v{vT+2}, 16, v{r}')
            I(f'v_and_b32 v{vT+3}, v{vMK}, v{r}')
            I(f'v_add_f32 v{a0}, v{a0}, v{vT+2}')
            I(f'v_add_f32 v{a1}, v{a1}, v{vT+3}')
            I(f'v_cvt_pk_bf16_f32 v{vP+2*ft+h}, v{a0}, v{a1}')
            if mode == 'g2':
                p = vP + 2 * ft + h
                I(f'v_lshlrev_b32 v{vT+2}, 16, v{p}')
                I(f'v_and_b32 v{vT+3}, v{vMK}, v{p}')
                I(f'v_add_f32 v{vST}, v{vST}, v{vT+2}')
                I(f'v_fmac_f32 v{vST+1}, v{vT+2}, v{vT+2}')
                I(f'v_add_f32 v{vST}, v{vST}, v{vT+3}')
                I(f'v_fmac_f32 v{vST+1}, v{vT+3}, v{vT+3}')
        I(f'buffer_store_dwordx2 v[{vP+2*ft}:{vP+2*ft+1}], v{vT+8}, s[{sO}:{sO+3}], 0 offen offset:{ft*32}')
    if mode == 'g2':
        C('row-chunk stats -> WS_ST[(row*8+ch)*8]')
        xlane_sum(I, vST, vT + 2); xlane_sum(I, vST + 1, vT + 2)
        ws_ptr(I, sP + 10, sP, WS_ST); srd(I, sO, sP + 10, sP + 11, S * 8 * 8)
        I(f'v_and_b32 v{vT}, 15, v{vLANE}')
        I(f's_lshl_b32 s{sTMP}, s{e["sWAVE"]}, 4'); I(f's_add_u32 s{sTMP}, s{sTMP}, s{e["sR0"]}')
        I(f'v_add_u32 v{vT}, s{sTMP}, v{vT}')
        I(f'v_lshl_add_u32 v{vT}, v{vT}, 3, s{sCH}')
        I(f'v_lshlrev_b32 v{vT}, 3, v{vT}')
        I(f'v_cmp_gt_u32 vcc, 16, v{vLANE}')
        I(f's_and_saveexec_b64 s[{sP+12}:{sP+13}], vcc')
        I(f'buffer_store_dwordx2 v[{vST}:{vST+1}], v{vT}, s[{sO}:{sO+3}], 0 offen')
        I(f's_mov_b64 exec, -1')

def epi_qkv(k):
    e = k._env; I = k.I; C = k.C
    vF, vT, vLANE, vST, vA = e['vF'], e['vT'], e['vLANE'], e['vST'], e['vA']
    sO, sCH, sP, sTMP, sWAVE, sR0, sN0 = e['sO'], e['sCH'], e['sP'], e['sTMP'], e['sWAVE'], e['sR0'], e['sN0']
    name = k.name
    vW = e['vTMPF']
    vMEAN, vRDEN, vCS = vW, vW + 1, vW + 4
    vX = vW + 24
    C('row stats: combine 4 wave partials, then across the 4 k-slab lane groups')
    I(f'v_add_f32 v{vST}, v{vST}, v{vST+1}'); I(f'v_add_f32 v{vST+2}, v{vST+2}, v{vST+3}')
    I(f'v_add_f32 v{vST}, v{vST}, v{vST+2}')
    I(f'v_add_f32 v{vST+4}, v{vST+4}, v{vST+5}'); I(f'v_add_f32 v{vST+6}, v{vST+6}, v{vST+7}')
    I(f'v_add_f32 v{vST+4}, v{vST+4}, v{vST+6}')
    xlane_sum(I, vST, vX); xlane_sum(I, vST + 4, vX)
    C('column sums: combine, reduce over lane groups, then permute to the D layout')
    for c in range(5):
        I(f'v_add_f32 v{vA+c}, v{vA+c}, v{vA+5+c}'); I(f'v_add_f32 v{vA+10+c}, v{vA+10+c}, v{vA+15+c}')
        I(f'v_add_f32 v{vA+c}, v{vA+c}, v{vA+10+c}')
        xlane_sum(I, vA + c, vX)
    I(f'v_lshrrev_b32 v{vX}, 4, v{vLANE}')
    I(f'v_lshlrev_b32 v{vX}, 4, v{vX}')
    for ft in range(5):
        for i in range(4):
            I(f'v_add_u32 v{vX+1}, {4*i}, v{vX}')
            I(f'ds_bpermute_b32 v{vCS+4*ft+i}, v{vX+1}, v{vA+ft}')
    ln_scalars(I, vST, vST + 4, vMEAN, vRDEN, vX + 2)
    I('s_waitcnt lgkmcnt(0)')
    C('y = (acc - mean*colsum) * rden')
    for r in range(20):
        I(f'v_fma_f32 v{vF+r}, -v{vMEAN}, v{vCS+r}, v{vF+r}')
        I(f'v_mul_f32 v{vF+r}, v{vF+r}, v{vRDEN}')
    C('row index of this lane')
    I(f'v_and_b32 v{vT}, 15, v{vLANE}')
    I(f's_lshl_b32 s{sTMP}, s{sWAVE}, 4'); I(f's_add_u32 s{sTMP}, s{sTMP}, s{sR0}')
    I(f'v_add_u32 v{vT}, s{sTMP}, v{vT}')
    I(f'v_lshrrev_b32 v{vT+1}, 4, v{vLANE}')
    I(f's_cmp_eq_u32 s{sCH}, 8'); I(f's_cbranch_scc1 L_epikv_{name}')
    C('---- Q: scale and store row-major')
    I(f'v_mov_b32 v{vX}, {f32bits(QSCALE):#x}')
    for r in range(20): I(f'v_mul_f32 v{vF+r}, v{vF+r}, v{vX}')
    I(f'v_mul_u32_u24 v{vT+2}, 1280, v{vT}')
    I(f'v_lshl_add_u32 v{vT+2}, v{vT+1}, 3, v{vT+2}')
    I(f's_lshl_b32 s{sTMP}, s{sN0}, 1')
    I(f'v_add_u32 v{vT+2}, s{sTMP}, v{vT+2}')
    for ft in range(5):
        I(f'v_cvt_pk_bf16_f32 v{vW+44+2*ft}, v{vF+4*ft}, v{vF+4*ft+1}')
        I(f'v_cvt_pk_bf16_f32 v{vW+44+2*ft+1}, v{vF+4*ft+2}, v{vF+4*ft+3}')
        I(f'buffer_store_dwordx2 v[{vW+44+2*ft}:{vW+44+2*ft+1}], v{vT+2}, s[{sO}:{sO+3}], 0 offen offset:{ft*32}')
    I(f's_branch L_end_{name}')
    k.L(f'L_epikv_{name}')
    C('---- K/V images')
    ws_ptr(I, sP + 10, sP, WS_KV); srd(I, sO, sP + 10, sP + 11, 64 * 4096)
    C('fix constants: K dims 20..31 and V rows 20..31')
    I(f'v_cmp_eq_u32 vcc, 1, v{vT+1}')
    I(f'v_cndmask_b32 v{vX}, 0, 1.0, vcc')
    I(f'v_cmp_eq_u32 vcc, 0, v{vT+1}')
    for ft in (1, 3):
        I(f'v_cndmask_b32 v{vF+4*ft}, v{vX}, v{vF+4*ft}, vcc')
        for i in (1, 2, 3):
            I(f'v_cndmask_b32 v{vF+4*ft+i}, 0, v{vF+4*ft+i}, vcc')
    C('tile base = (key>>5)*4096 ; kk = key&31')
    I(f'v_lshrrev_b32 v{vT+2}, 5, v{vT}')
    I(f'v_lshlrev_b32 v{vT+2}, 12, v{vT+2}')
    I(f'v_and_b32 v{vT+3}, 31, v{vT}')
    C('K: addr = base + op*1024 + (kk + 32*(g>>1))*16 + (g&1)*8')
    I(f'v_lshrrev_b32 v{vT+4}, 1, v{vT+1}')
    I(f'v_lshl_add_u32 v{vT+4}, v{vT+4}, 5, v{vT+3}')
    I(f'v_lshl_add_u32 v{vT+4}, v{vT+4}, 4, v{vT+2}')
    I(f'v_and_b32 v{vT+5}, 1, v{vT+1}')
    I(f'v_lshl_add_u32 v{vT+4}, v{vT+5}, 3, v{vT+4}')
    for ft in (0, 1):
        I(f'v_cvt_pk_bf16_f32 v{vW+44+2*ft}, v{vF+4*ft}, v{vF+4*ft+1}')
        I(f'v_cvt_pk_bf16_f32 v{vW+44+2*ft+1}, v{vF+4*ft+2}, v{vF+4*ft+3}')
        I(f'buffer_store_dwordx2 v[{vW+44+2*ft}:{vW+44+2*ft+1}], v{vT+4}, s[{sO}:{sO+3}], 0 offen offset:{ft*1024}')
    C('V: addr = base + 2048 + j*1024 + (d + 32*hh)*16 + jj*2 ; j=kk>>4, r=kk&15, jj=(r>>3)*4+(r&3), hh=(r>>2)&1')
    I(f'v_lshrrev_b32 v{vT+4}, 4, v{vT+3}')
    I(f'v_lshl_add_u32 v{vT+4}, v{vT+4}, 10, v{vT+2}')
    I(f'v_add_u32 v{vT+4}, 2048, v{vT+4}')
    I(f'v_lshrrev_b32 v{vT+5}, 2, v{vT+3}'); I(f'v_and_b32 v{vT+5}, 1, v{vT+5}')
    I(f'v_lshl_add_u32 v{vT+4}, v{vT+5}, 9, v{vT+4}')
    I(f'v_lshrrev_b32 v{vT+5}, 3, v{vT+3}'); I(f'v_and_b32 v{vT+5}, 1, v{vT+5}')
    I(f'v_and_b32 v{vT+6}, 3, v{vT+3}')
    I(f'v_lshl_add_u32 v{vT+5}, v{vT+5}, 2, v{vT+6}')
    I(f'v_lshl_add_u32 v{vT+4}, v{vT+5}, 1, v{vT+4}')
    I(f'v_lshl_add_u32 v{vT+4}, v{vT+1}, 6, v{vT+4}')
    for ft in (2, 3):
        for i in range(4):
            I(f'v_cvt_pk_bf16_f32 v{vX+2}, v{vF+4*ft+i}, v{vF+4*ft+i}')
            I(f'buffer_store_short v{vX+2}, v{vT+4}, s[{sO}:{sO+3}], 0 offen offset:{(ft-2)*256 + i*16}')

AT_CH = 4
AT_NB = 3
AT_CHB = AT_CH * 4096
AT_LDS = 2 * AT_NB * AT_CHB

def attn_kernel(name):
    k = Kernel(name); I = k.I; C = k.C
    END = 'L_end_' + name
    sQ, sKV, sO = 4, 8, 12
    sWAVE, sHALF, sTMP, sQB, sHEAD, sCNT, sLD, sRD, sSRC, sHB = 20, 21, 22, 23, 24, 25, 26, 27, 28, 29
    sP = 32
    vLANE = 1; vT = 2
    vDMA = 12
    vRDA = 13
    vQF = 16
    vKF = 32
    vS = 64
    vPk = 128
    vO = 144
    def qf(ct, f): b = vQF + 8 * ct + 4 * f; return f'v[{b}:{b+3}]'
    def kf(set_, j): b = vKF + 16 * set_ + 4 * j; return f'v[{b}:{b+3}]'
    def st(set_, ct): b = vS + 32 * set_ + 16 * ct; return f'v[{b}:{b+15}]'
    def oacc(ct): b = vO + 16 * ct; return f'v[{b}:{b+15}]'
    def pk(ct, h): b = vPk + 8 * ct + 4 * h; return f'v[{b}:{b+3}]'

    I('s_cmp_ge_u32 s2, 256'); I('s_cbranch_scc1 ' + END)
    stamp(k, 0)
    load_ptr(I, sP, 'ws')
    I(f'v_lshrrev_b32 v{vT}, 6, v0'); I(f'v_and_b32 v{vLANE}, 63, v0')
    I(f'v_readfirstlane_b32 s{sWAVE}, v{vT}')
    C('wg -> (xcd, idx): query block qb = xcd*4 + (idx&3), head group hg = idx>>2')
    I(f's_and_b32 s{sQB}, s2, 7'); I(f's_lshr_b32 s{sHEAD}, s2, 3')
    I(f's_and_b32 s{sTMP}, s{sHEAD}, 3'); I(f's_lshr_b32 s{sHEAD}, s{sHEAD}, 2')
    I(f's_lshl_b32 s{sQB}, s{sQB}, 2'); I(f's_add_u32 s{sQB}, s{sQB}, s{sTMP}')
    I(f's_lshl_b32 s{sHEAD}, s{sHEAD}, 2'); I(f's_and_b32 s{sTMP}, s{sWAVE}, 3'); I(f's_add_u32 s{sHEAD}, s{sHEAD}, s{sTMP}')
    I(f's_lshr_b32 s{sHALF}, s{sWAVE}, 2')
    I('s_waitcnt lgkmcnt(0)')
    ws_ptr(I, sP + 2, sP, WS_Q); srd(I, sQ, sP + 2, sP + 3, XBYTES)
    ws_ptr(I, sP + 2, sP, WS_KV); srd(I, sKV, sP + 2, sP + 3, 64 * 4096)
    ws_ptr(I, sP + 2, sP, WS_O); srd(I, sO, sP + 2, sP + 3, XBYTES)
    C('Q fragments: lane: query = qb*64 + 32ct + (l&31) ; bytes head*40 + (l>>5)*16 ; frag1 = 8 bytes at +32 (lanes<32)')
    I(f'v_and_b32 v{vT}, 31, v{vLANE}')
    I(f's_lshl_b32 s{sTMP}, s{sQB}, 6')
    I(f'v_add_u32 v{vT}, s{sTMP}, v{vT}')
    I(f'v_mul_u32_u24 v{vT}, 1280, v{vT}')
    I(f'v_lshrrev_b32 v{vT+1}, 5, v{vLANE}')
    I(f'v_lshl_add_u32 v{vT}, v{vT+1}, 4, v{vT}')
    I(f's_mul_i32 s{sTMP}, s{sHEAD}, 40')
    I(f'v_add_u32 v{vT}, s{sTMP}, v{vT}')
    for ct in range(2):
        I(f'buffer_load_dwordx4 {qf(ct,0)}, v{vT}, s[{sQ}:{sQ+3}], 0 offen offset:{ct*32*1280}') if ct*32*1280 < 4096 else None
    I(f'v_add_u32 v{vT+2}, 40960, v{vT}')
    I(f'buffer_load_dwordx4 {qf(1,0)}, v{vT+2}, s[{sQ}:{sQ+3}], 0 offen')
    I(f'buffer_load_dwordx2 v[{vQF+4}:{vQF+5}], v{vT}, s[{sQ}:{sQ+3}], 0 offen offset:32')
    I(f'buffer_load_dwordx2 v[{vQF+12}:{vQF+13}], v{vT+2}, s[{sQ}:{sQ+3}], 0 offen offset:32')
    C('K tile 0 fragments straight from global (for the reference max)')
    I(f'v_lshlrev_b32 v{vT+3}, 4, v{vLANE}')
    I(f'buffer_load_dwordx4 {kf(0,0)}, v{vT+3}, s[{sKV}:{sKV+3}], 0 offen offset:0')
    I(f'buffer_load_dwordx4 {kf(0,1)}, v{vT+3}, s[{sKV}:{sKV+3}], 0 offen offset:1024')
    C('DMA setup: each wave of a half copies 4 KB (one key tile) of each chunk')
    I(f's_and_b32 s{sTMP}, s{sWAVE}, 3')
    I(f's_lshl_b32 s{sSRC}, s{sTMP}, 12')
    I(f's_mul_i32 s{sHB}, s{sHALF}, {32 * 4096}')
    I(f's_add_u32 s{sSRC}, s{sSRC}, s{sHB}')
    I(f's_mul_i32 s{sLD}, s{sHALF}, {AT_NB * AT_CHB}')
    I(f's_lshl_b32 s{sTMP}, s{sTMP}, 12'); I(f's_add_u32 s{sLD}, s{sLD}, s{sTMP}')
    I(f'v_lshlrev_b32 v{vDMA}, 4, v{vLANE}')
    I(f's_mul_i32 s{sTMP}, s{sHALF}, {AT_NB * AT_CHB}')
    I(f'v_lshlrev_b32 v{vRDA}, 4, v{vLANE}')
    I(f'v_add_u32 v{vRDA}, s{sTMP}, v{vRDA}')
    def dma_chunk(slot):
        I(f's_add_u32 m0, s{sLD}, {slot * AT_CHB}')
        for j in range(4):
            I(f'buffer_load_dwordx4 v{vDMA}, s[{sKV}:{sKV+3}], s{sSRC} offen offset:{j*1024} lds')
        I(f's_add_u32 s{sSRC}, s{sSRC}, {AT_CHB}')
    dma_chunk(0); dma_chunk(1)
    C('zero upper parts of Q frag1; lanes>=32 hold dims 24..31 = 0')
    for ct in range(2):
        b = vQF + 8 * ct
        I(f'v_mov_b32 v{b+6}, 0'); I(f'v_mov_b32 v{b+7}, 0')
    I(f'v_cmp_gt_u32 vcc, 32, v{vLANE}')
    I('s_waitcnt vmcnt(8)')
    for ct in range(2):
        b = vQF + 8 * ct
        I(f'v_cndmask_b32 v{b+4}, 0, v{b+4}, vcc'); I(f'v_cndmask_b32 v{b+5}, 0, v{b+5}, vcc')
    C('reference max from key tile 0')
    for ct in range(2):
        I(f'v_mfma_f32_32x32x16_bf16 {st(0,ct)}, {kf(0,0)}, {qf(ct,0)}, 0')
        I(f'v_mfma_f32_32x32x16_bf16 {st(0,ct)}, {kf(0,1)}, {qf(ct,1)}, {st(0,ct)}')
    for ct in range(2):
        b = vS + 16 * ct
        m = vT + 4 + ct
        I(f'v_max3_f32 v{m}, v{b}, v{b+1}, v{b+2}')
        for r in range(3, 15, 2):
            I(f'v_max3_f32 v{m}, v{m}, v{b+r}, v{b+r+1}')
        I(f'v_max_f32 v{m}, v{m}, v{b+15}')
        I(f'v_mov_b32 v{vT+6}, v{m}')
        I(f'v_permlane32_swap_b32 v{m}, v{vT+6}')
        I(f'v_max_f32 v{m}, v{m}, v{vT+6}')
        C('bf16-round, negate, insert at dim 20 (low half of frag1 reg 2) for lanes<32')
        I(f'v_sub_f32 v{m}, 0, v{m}')
        I(f'v_cvt_pk_bf16_f32 v{m}, v{m}, v{m}')
        I(f'v_and_b32 v{m}, 0xffff, v{m}')
        I(f'v_cndmask_b32 v{vQF+8*ct+6}, 0, v{m}, vcc')
    for ct in range(2):
        for r in range(16): I(f'v_mov_b32 v{vO+16*ct+r}, 0')

    NCHUNK = 8
    I(f's_mov_b32 s{sCNT}, 0')
    I(f's_mov_b32 s{sRD}, 0')
    stamp(k, 1)
    k.L('L_loop_' + name)
    def read_frags(set_, tile):
        for j in range(4):
            I(f'ds_read_b128 {kf(set_,j)}, v{vT+7} offset:{tile*4096 + j*1024}')
    def qk(set_):
        for ct in range(2):
            I(f'v_mfma_f32_32x32x16_bf16 {st(set_,ct)}, {kf(set_,0)}, {qf(ct,0)}, 0')
        for ct in range(2):
            I(f'v_mfma_f32_32x32x16_bf16 {st(set_,ct)}, {kf(set_,1)}, {qf(ct,1)}, {st(set_,ct)}')
    def softmax_pv(set_):
        for ct in range(2):
            b = vS + 32 * set_ + 16 * ct
            for r in range(16): I(f'v_exp_f32 v{b+r}, v{b+r}')
            for t in range(8):
                I(f'v_cvt_pk_bf16_f32 v{vPk+8*ct+t}, v{b+2*t}, v{b+2*t+1}')
        for ct in range(2):
            I(f'v_mfma_f32_32x32x16_bf16 {oacc(ct)}, {kf(set_,2)}, {pk(ct,0)}, {oacc(ct)}')
            I(f'v_mfma_f32_32x32x16_bf16 {oacc(ct)}, {kf(set_,3)}, {pk(ct,1)}, {oacc(ct)}')
    for slot in range(AT_NB):
        C(f'ring slot {slot}: wait chunk, barrier, prefetch chunk+2')
        I('s_waitcnt vmcnt(4)')
        I('s_barrier')
        dma_chunk((slot + 2) % AT_NB)
        I(f'v_add_u32 v{vT+7}, {slot * AT_CHB}, v{vRDA}')
        for tile in range(AT_CH):
            set_ = tile & 1
            read_frags(set_, tile)
            I('s_waitcnt lgkmcnt(0)')
            qk(set_)
            softmax_pv(set_)
        I(f's_add_u32 s{sCNT}, s{sCNT}, 1')
        I(f's_cmp_ge_u32 s{sCNT}, {NCHUNK}')
        I(f's_cbranch_scc1 L_done_' + name)
    I(f's_branch L_loop_' + name)
    k.L('L_done_' + name)
    stamp(k, 2)
    C('waves 4-7 dump O acc to LDS (reuse ring after all DMA drained); waves 0-3 add')
    I('s_waitcnt vmcnt(0)')
    I('s_barrier')
    I(f's_and_b32 s{sTMP}, s{sWAVE}, 3'); I(f's_lshl_b32 s{sTMP}, s{sTMP}, 13')
    I(f'v_lshlrev_b32 v{vT}, 4, v{vLANE}'); I(f'v_add_u32 v{vT}, s{sTMP}, v{vT}')
    I(f's_cmp_eq_u32 s{sHALF}, 0'); I(f's_cbranch_scc1 L_lo_' + name)
    for ct in range(2):
        for q in range(4):
            b = vO + 16 * ct + 4 * q
            I(f'ds_write_b128 v{vT}, v[{b}:{b+3}] offset:{(ct*4+q)*1024}')
    I('s_waitcnt lgkmcnt(0)')
    I('s_barrier')
    I('s_branch ' + END)
    k.L('L_lo_' + name)
    I('s_barrier')
    for ct in range(2):
        for q in range(4):
            b = vS + 16 * ct + 4 * q
            I(f'ds_read_b128 v[{b}:{b+3}], v{vT} offset:{(ct*4+q)*1024}')
    I('s_waitcnt lgkmcnt(0)')
    for ct in range(2):
        for r in range(16):
            I(f'v_add_f32 v{vO+16*ct+r}, v{vO+16*ct+r}, v{vS+16*ct+r}')
    C('l lives in reg 8 of lanes>=32 (row 20): broadcast to both halves, rcp, scale, pack, store')
    I(f'v_and_b32 v{vT+1}, 31, v{vLANE}')
    I(f's_lshl_b32 s{sTMP}, s{sQB}, 6')
    I(f'v_add_u32 v{vT+1}, s{sTMP}, v{vT+1}')
    I(f'v_mul_u32_u24 v{vT+1}, 1280, v{vT+1}')
    I(f'v_lshrrev_b32 v{vT+2}, 5, v{vLANE}')
    I(f'v_lshl_add_u32 v{vT+1}, v{vT+2}, 3, v{vT+1}')
    I(f's_mul_i32 s{sTMP}, s{sHEAD}, 40')
    I(f'v_add_u32 v{vT+1}, s{sTMP}, v{vT+1}')
    I(f'v_add_u32 v{vT+2}, 40960, v{vT+1}')
    for ct in range(2):
        lreg = vO + 16 * ct + 8
        I(f'v_mov_b32 v{vT+3}, v{lreg}')
        I(f'v_mov_b32 v{vT+4}, v{lreg}')
        I(f'v_permlane32_swap_b32 v{vT+3}, v{vT+4}')
        I(f'v_rcp_f32 v{vT+4}, v{vT+4}')
        for g in range(3):
            b = vO + 16 * ct + 4 * g
            for i in range(4): I(f'v_mul_f32 v{b+i}, v{b+i}, v{vT+4}')
            I(f'v_cvt_pk_bf16_f32 v{vPk+2*g}, v{b}, v{b+1}')
            I(f'v_cvt_pk_bf16_f32 v{vPk+2*g+1}, v{b+2}, v{b+3}')
        addr = vT + 1 + ct
        for g in range(2):
            I(f'buffer_store_dwordx2 v[{vPk+2*g}:{vPk+2*g+1}], v{addr}, s[{sO}:{sO+3}], 0 offen offset:{g*16}')
        I(f'v_cmp_gt_u32 vcc, 32, v{vLANE}')
        I(f's_and_saveexec_b64 s[{sP+12}:{sP+13}], vcc')
        I(f'buffer_store_dwordx2 v[{vPk+4}:{vPk+5}], v{addr}, s[{sO}:{sO+3}], 0 offen offset:32')
        I('s_mov_b64 exec, -1')
    stamp(k, 3)
    stamp_flush(k, 4, sP)
    k.L(END)
    I('s_endpgm')
    return k

G3_NS = 3
G3_XB, G3_WB = 32768, 8192
G3_STAGE = G3_XB + 2 * G3_WB
G3_LDS = G3_NS * G3_STAGE

def g3_kernel(name):
    k = Kernel(name); I = k.I; C = k.C
    END = 'L_end_' + name
    NWG = 216
    sX, sG, sU, sH, sS = 4, 8, 12, 16, 20
    sWAVE, sWR, sWC, sTMP, sR0, sN0, sKX, sKW = 24, 25, 26, 27, 28, 29, 30, 31
    sP = 32
    vLANE = 1; vT = 2
    vXOFF = 10
    vWOFF = 14
    vXRD, vWRD = 15, 16
    vCS = 18
    vXA, vWA, vXS = 20, 22, 24
    vSTL = 26
    vB = 58
    vA = 74
    vACC = 90
    vE = 154
    def acc(gu, rt): b = vACC + (gu * 2 + rt) * 16; return f'v[{b}:{b+15}]'
    def bf(set_, rt): b = vB + set_ * 8 + rt * 4; return b
    def af(set_, gu): b = vA + set_ * 8 + gu * 4; return b

    I(f's_cmp_ge_u32 s2, {NWG}'); I('s_cbranch_scc1 ' + END)
    stamp(k, 0)
    load_ptr(I, sP, 'ws'); load_ptr(I, sP + 2, 'wg'); load_ptr(I, sP + 4, 'wu')
    I(f'v_lshrrev_b32 v{vT}, 6, v0'); I(f'v_and_b32 v{vLANE}, 63, v0')
    I(f'v_readfirstlane_b32 s{sWAVE}, v{vT}')
    C('wg -> row block (wg&7) [one per XCD], column chunk wg>>3 (0..26)')
    I(f's_and_b32 s{sR0}, s2, 7'); I(f's_lshl_b32 s{sR0}, s{sR0}, 8')
    I(f's_lshr_b32 s{sN0}, s2, 3'); I(f's_lshl_b32 s{sN0}, s{sN0}, 6')
    I(f's_lshr_b32 s{sWR}, s{sWAVE}, 1'); I(f's_and_b32 s{sWC}, s{sWAVE}, 1')
    I('s_waitcnt lgkmcnt(0)')
    ws_ptr(I, sP + 6, sP, WS_X1); srd(I, sX, sP + 6, sP + 7, XBYTES)
    srd(I, sG, sP + 2, sP + 3, D * DF * 2); srd(I, sU, sP + 4, sP + 5, D * DF * 2)
    ws_ptr(I, sP + 6, sP, WS_H); srd(I, sH, sP + 6, sP + 7, HBYTES)
    ws_ptr(I, sP + 6, sP, WS_ST); srd(I, sS, sP + 6, sP + 7, S * 64)
    C('row stats loads: row = r0 + 64*wr + 32rt + (l&31) ; 64 B each')
    I(f'v_and_b32 v{vT}, 31, v{vLANE}')
    I(f's_lshl_b32 s{sTMP}, s{sWR}, 6'); I(f's_add_u32 s{sTMP}, s{sTMP}, s{sR0}')
    I(f'v_add_u32 v{vT}, s{sTMP}, v{vT}')
    I(f'v_lshlrev_b32 v{vT+1}, 6, v{vT}')
    for rt in range(2):
        for q in range(4):
            b = vSTL + rt * 16 + q * 4
            I(f'buffer_load_dwordx4 v[{b}:{b+3}], v{vT+1}, s[{sS}:{sS+3}], 0 offen offset:{rt*2048 + q*16}')
    C('X DMA voffsets: instr jj=4w+j covers rows 8jj..8jj+7 ; piece = (l&7) ^ (((j&1)<<2)|(l>>4))')
    I(f'v_lshrrev_b32 v{vT+1}, 3, v{vLANE}')
    I(f's_lshl_b32 s{sTMP}, s{sWAVE}, 5'); I(f's_add_u32 s{sTMP}, s{sTMP}, s{sR0}')
    I(f'v_add_u32 v{vT+1}, s{sTMP}, v{vT+1}')
    I(f'v_mul_u32_u24 v{vT+1}, 1280, v{vT+1}')
    I(f'v_lshrrev_b32 v{vT+2}, 4, v{vLANE}')
    I(f'v_and_b32 v{vT+3}, 7, v{vLANE}')
    for j in range(4):
        I(f'v_xor_b32 v{vT+4}, v{vT+2}, v{vT+3}')
        if j & 1: I(f'v_xor_b32 v{vT+4}, 4, v{vT+4}')
        I(f'v_lshl_add_u32 v{vXOFF+j}, v{vT+4}, 4, v{vT+1}')
        if j: I(f'v_add_u32 v{vXOFF+j}, {8*j*1280}, v{vXOFF+j}')
    C('W DMA voffset: k = 8w + (l>>3) ; piece = (l&7) ^ ((k&3)*2)')
    I(f'v_lshrrev_b32 v{vT+1}, 3, v{vLANE}')
    I(f'v_and_b32 v{vT+2}, 3, v{vT+1}'); I(f'v_lshlrev_b32 v{vT+2}, 1, v{vT+2}')
    I(f'v_xor_b32 v{vT+2}, v{vT+2}, v{vT+3}')
    I(f's_lshl_b32 s{sTMP}, s{sWAVE}, 3')
    I(f'v_add_u32 v{vT+1}, s{sTMP}, v{vT+1}')
    I(f'v_mul_u32_u24 v{vT+1}, {DF*2}, v{vT+1}')
    I(f'v_lshl_add_u32 v{vWOFF}, v{vT+2}, 4, v{vT+1}')
    I(f's_lshl_b32 s{sTMP}, s{sN0}, 1')
    I(f'v_add_u32 v{vWOFF}, s{sTMP}, v{vWOFF}')
    C('B frag read base: row = 64wr + 32rt + (l&31); slot = (2s + (l>>5)) ^ ((row>>1)&7)  -> handled per K step')
    I(f'v_and_b32 v{vT}, 31, v{vLANE}')
    I(f's_lshl_b32 s{sTMP}, s{sWR}, 6')
    I(f'v_add_u32 v{vT}, s{sTMP}, v{vT}')
    I(f'v_lshrrev_b32 v{vT+1}, 1, v{vT}'); I(f'v_and_b32 v{vT+1}, 7, v{vT+1}')
    I(f'v_lshrrev_b32 v{vT+2}, 5, v{vLANE}')
    I(f'v_xor_b32 v{vT+1}, v{vT+1}, v{vT+2}')
    I(f'v_lshlrev_b32 v{vT+1}, 4, v{vT+1}')
    I(f'v_lshl_add_u32 v{vXRD}, v{vT}, 7, v{vT+1}')
    C('A frag tr base: g=l>>4,i=l&15: k = (g>>1)*8 + (i>>2); byte = 64wc... + (g&1)*32 + (i&3)*8 ; piece ^= (k&3)*2')
    I(f'v_and_b32 v{vT}, 15, v{vLANE}'); I(f'v_lshrrev_b32 v{vT+1}, 4, v{vLANE}')
    I(f'v_lshrrev_b32 v{vT+2}, 1, v{vT+1}'); I(f'v_lshlrev_b32 v{vT+2}, 3, v{vT+2}')
    I(f'v_lshrrev_b32 v{vT+3}, 2, v{vT}'); I(f'v_add_u32 v{vT+2}, v{vT+2}, v{vT+3}')
    I(f'v_and_b32 v{vT+3}, 1, v{vT+1}'); I(f'v_lshlrev_b32 v{vT+3}, 5, v{vT+3}')
    I(f'v_and_b32 v{vT+4}, 3, v{vT}'); I(f'v_lshl_add_u32 v{vT+3}, v{vT+4}, 3, v{vT+3}')
    I(f's_lshl_b32 s{sTMP}, s{sWC}, 6')
    I(f'v_add_u32 v{vT+3}, s{sTMP}, v{vT+3}')
    k._g3 = dict(vk=vT+2, vbyte=vT+3)
    C('two address regs: first (k) and second (k+4) reads, swizzled')
    for idx, kadd in ((0, 0), (1, 4)):
        I(f'v_add_u32 v{vT+5}, {kadd}, v{vT+2}')
        I(f'v_and_b32 v{vT+6}, 3, v{vT+5}'); I(f'v_lshlrev_b32 v{vT+6}, 5, v{vT+6}')
        I(f'v_xor_b32 v{vT+6}, v{vT+6}, v{vT+3}')
        I(f'v_lshl_add_u32 v{vWRD+idx}, v{vT+5}, 7, v{vT+6}')
        I(f'v_add_u32 v{vWRD+idx}, {G3_XB}, v{vWRD+idx}')
    I(f'v_mov_b32 v{vE+40}, 0x3f803f80')
    vONE2 = vE + 40
    I(f'v_mov_b32 v{vCS}, 0'); I(f'v_mov_b32 v{vCS+1}, 0')
    for r in range(64): I(f'v_mov_b32 v{vACC+r}, 0')
    I(f's_mov_b32 s{sKX}, 0'); I(f's_mov_b32 s{sKW}, 0')

    def dma_stage(slot):
        base = slot * G3_STAGE
        for j in range(4):
            I(f's_lshl_b32 s{sTMP}, s{sWAVE}, 12'); I(f's_add_u32 m0, s{sTMP}, {base + j*1024}')
            I(f'buffer_load_dwordx4 v{vXOFF+j}, s[{sX}:{sX+3}], s{sKX} offen lds')
        for gu, sr in enumerate((sG, sU)):
            I(f's_lshl_b32 s{sTMP}, s{sWAVE}, 10'); I(f's_add_u32 m0, s{sTMP}, {base + G3_XB + gu*G3_WB}')
            I(f'buffer_load_dwordx4 v{vWOFF}, s[{sr}:{sr+3}], s{sKW} offen lds')
        I(f's_add_u32 s{sKX}, s{sKX}, 128'); I(f's_add_u32 s{sKW}, s{sKW}, {64*DF*2}')

    NSTAGE = D // 64
    dma_stage(0); dma_stage(1)
    stamp(k, 1)
    def reads(set_, slot, ks):
        for rt in range(2):
            b = bf(set_, rt)
            I(f'ds_read_b128 v[{b}:{b+3}], v{vXA+(ks&1)} offset:{rt*4096}')
        for gu in range(2):
            b = af(set_, gu)
            I(f'ds_read_b64_tr_b16 v[{b}:{b+1}], v{vWA} offset:{gu*G3_WB + ks*2048}')
            I(f'ds_read_b64_tr_b16 v[{b+2}:{b+3}], v{vWA+1} offset:{gu*G3_WB + ks*2048}')
    for st_ in range(NSTAGE):
        slot = st_ % G3_NS
        C(f'stage {st_}')
        I(f's_waitcnt vmcnt({6 if st_ + 1 < NSTAGE else 0})' if st_ > 0 else f's_waitcnt vmcnt(6)')
        I('s_barrier')
        if st_ + 2 < NSTAGE: dma_stage((st_ + 2) % G3_NS)
        I(f'v_add_u32 v{vXS}, {slot * G3_STAGE}, v{vXRD}')
        I(f'v_add_u32 v{vWA}, {slot * G3_STAGE}, v{vWRD}')
        I(f'v_add_u32 v{vWA+1}, {slot * G3_STAGE}, v{vWRD+1}')
        for ks in range(4):
            I(f'v_xor_b32 v{vXA+(ks&1)}, {ks*32}, v{vXS}')
            set_ = ks & 1
            reads(set_, slot, ks)
            I('s_waitcnt lgkmcnt(0)')
            for gu in range(2):
                for rt in range(2):
                    a = af(set_, gu); b = bf(set_, rt)
                    I(f'v_mfma_f32_32x32x16_bf16 {acc(gu,rt)}, v[{a}:{a+3}], v[{b}:{b+3}], {acc(gu,rt)}')
            for gu in range(2):
                a = af(set_, gu)
                for j in range(4):
                    I(f'v_dot2_f32_bf16 v{vCS+gu}, v{a+j}, v{vONE2}, v{vCS+gu}')
    stamp(k, 2)
    C('row stats')
    vMEAN, vRDEN = vE, vE + 2
    for rt in range(2):
        b = vSTL + rt * 16
        for q in range(1, 8):
            I(f'v_add_f32 v{b}, v{b}, v{b+2*q}'); I(f'v_add_f32 v{b+1}, v{b+1}, v{b+2*q+1}')
        ln_scalars(I, b, b + 1, vMEAN + rt, vRDEN + rt, vE + 4)
    C('column sums: reduce lanes l,l^32 then permute to D layout via LDS (wave private region)')
    I('s_barrier')
    for gu in range(2):
        I(f'v_mov_b32 v{vE+4}, v{vCS+gu}')
        I(f'v_permlane32_swap_b32 v{vCS+gu}, v{vE+4}')
        I(f'v_add_f32 v{vCS+gu}, v{vCS+gu}, v{vE+4}')
    I(f's_lshl_b32 s{sTMP}, s{sWAVE}, 8')
    I(f'v_lshlrev_b32 v{vE+4}, 2, v{vLANE}'); I(f'v_add_u32 v{vE+4}, s{sTMP}, v{vE+4}')
    I(f'ds_write_b32 v{vE+4}, v{vCS}'); I(f'ds_write_b32 v{vE+4}, v{vCS+1} offset:2048')
    I(f'v_lshrrev_b32 v{vE+5}, 5, v{vLANE}'); I(f'v_lshlrev_b32 v{vE+5}, 4, v{vE+5}')
    I(f'v_add_u32 v{vE+5}, s{sTMP}, v{vE+5}')
    I('s_waitcnt lgkmcnt(0)')
    vCG, vCU = vE + 8, vE + 24
    for q in range(4):
        I(f'ds_read_b128 v[{vCG+4*q}:{vCG+4*q+3}], v{vE+5} offset:{q*32}')
        I(f'ds_read_b128 v[{vCU+4*q}:{vCU+4*q+3}], v{vE+5} offset:{2048 + q*32}')
    C('output addresses')
    I(f'v_and_b32 v{vT}, 31, v{vLANE}')
    I(f's_lshl_b32 s{sTMP}, s{sWR}, 6'); I(f's_add_u32 s{sTMP}, s{sTMP}, s{sR0}')
    I(f'v_add_u32 v{vT}, s{sTMP}, v{vT}')
    I(f's_mov_b32 s{sTMP}, {DF*2}')
    I(f'v_mul_lo_u32 v{vT}, v{vT}, s{sTMP}')
    I(f'v_lshrrev_b32 v{vT+1}, 5, v{vLANE}')
    I(f'v_lshl_add_u32 v{vT}, v{vT+1}, 3, v{vT}')
    I(f's_lshl_b32 s{sTMP}, s{sWC}, 5'); I(f's_add_u32 s{sTMP}, s{sTMP}, s{sN0}'); I(f's_lshl_b32 s{sTMP}, s{sTMP}, 1')
    I(f'v_add_u32 v{vT}, s{sTMP}, v{vT}')
    I(f'v_add_u32 v{vT+1}, {32*DF*2}, v{vT}')
    c0 = -2.0 * 1.4426950408889634 * 0.7978845608028654
    I(f'v_mov_b32 v{vT+2}, {f32bits(c0):#x}'); I(f'v_mov_b32 v{vT+3}, {f32bits(c0*0.044715):#x}')
    I('s_waitcnt lgkmcnt(0)')
    for rt in range(2):
        for r in range(16):
            g = vACC + rt * 16 + r; u = vACC + 32 + rt * 16 + r
            I(f'v_fma_f32 v{g}, -v{vMEAN+rt}, v{vCG+r}, v{g}')
            I(f'v_mul_f32 v{g}, v{g}, v{vRDEN+rt}')
            I(f'v_fma_f32 v{u}, -v{vMEAN+rt}, v{vCU+r}, v{u}')
            I(f'v_mul_f32 v{u}, v{u}, v{vRDEN+rt}')
            I(f'v_mul_f32 v{vT+4}, v{g}, v{g}')
            I(f'v_fma_f32 v{vT+4}, v{vT+4}, v{vT+3}, v{vT+2}')
            I(f'v_mul_f32 v{vT+4}, v{vT+4}, v{g}')
            I(f'v_exp_f32 v{vT+4}, v{vT+4}')
            I(f'v_add_f32 v{vT+4}, 1.0, v{vT+4}')
            I(f'v_rcp_f32 v{vT+4}, v{vT+4}')
            I(f'v_mul_f32 v{g}, v{g}, v{vT+4}')
            I(f'v_mul_f32 v{g}, v{g}, v{u}')
        for q in range(4):
            b = vACC + rt * 16 + 4 * q
            I(f'v_cvt_pk_bf16_f32 v{vE+4}, v{b}, v{b+1}'); I(f'v_cvt_pk_bf16_f32 v{vE+5}, v{b+2}, v{b+3}')
            I(f'buffer_store_dwordx2 v[{vE+4}:{vE+5}], v{vT+rt}, s[{sH}:{sH+3}], 0 offen offset:{q*16}')
    stamp(k, 3)
    stamp_flush(k, 4, sP)
    k.L(END)
    I('s_endpgm')
    return k
```

```python
import sys; sys.path.insert(0,'tools')
import gen, asmgen
ks = [gen.t1_kernel('g1a_kernel','g1',0), gen.attn_kernel('att_kernel'), gen.t1_kernel('g2a_kernel','g2',0),
      gen.g3_kernel('g3_kernel'), gen.t1_kernel('g4a_kernel','g4',0),
      gen.t1_kernel('g1b_kernel','g1',1), gen.t1_kernel('g2b_kernel','g2',1), gen.t1_kernel('g4b_kernel','g4',1)]
for k in ks: k.hazard_pass()
L = [('g1a_kernel',288,256,gen.t1_lds('g1')),('att_kernel',256,512,gen.AT_LDS),('g2a_kernel',256,256,gen.T1_LDS),
     ('g3_kernel',216,512,gen.G3_LDS),('g4a_kernel',256,256,gen.T1_LDS),
     ('g1b_kernel',288,256,gen.t1_lds('g1')),('att_kernel',256,512,gen.AT_LDS),('g2b_kernel',256,256,gen.T1_LDS),
     ('g3_kernel',216,512,gen.G3_LDS),('g4b_kernel',256,256,gen.T1_LDS)]
hdr = """Two interleaved (MQA attention + GEGLU FFN) blocks, bf16, S=2048 D=640 H=32 Dh=20 F=1728.
Launch list: [LN+QKV proj] [attention] [O-proj+residual(+LN stats)] [LN-folded gate/up + GEGLU] [down+residual] x2."""
txt = asmgen.build_file(ks, L, hdr)
out = sys.argv[1] if len(sys.argv) > 1 else 'interleave_layers__grouped_kv_mqa__glu_gated_geglu__prompt.s'
open(out,'w').write(txt)
print(out, len(txt))
```

```python
import sys
sys.path.insert(0, 'tools')
from asmgen import Kernel, build_file

S, D, H, DH, DF = 2048, 640, 32, 20, 1728
KA = dict(x=0, wq=8, wk=16, wv=24, wo=32, bx=40, wg=48, wu=56, wd=64, out=72, dbg=80, ws=88)
WS_Q   = 0x000000
WS_O   = 0x300000
WS_X1  = 0x600000
WS_X2  = 0x900000
WS_KV  = 0xC00000
WS_ST  = 0xD00000
WS_H   = 0x1000000
XBYTES = S * D * 2
HBYTES = S * DF * 2

QSCALE = (DH ** -0.5) * 1.4426950408889634

def f32bits(x):
    import struct
    return struct.unpack('<I', struct.pack('<f', x))[0]

def srd(I, sreg, lo, hi, nbytes):
    I(f's_mov_b32 s{sreg}, s{lo}'); I(f's_mov_b32 s{sreg+1}, s{hi}')
    I(f's_mov_b32 s{sreg+2}, {nbytes}'); I(f's_mov_b32 s{sreg+3}, 0x00020000')

def load_ptr(I, dst, key):
    I(f's_load_dwordx2 s[{dst}:{dst+1}], s[0:1], {KA[key]}')

def ws_ptr(I, dst, wsbase, off):
    I(f's_add_u32 s{dst}, s{wsbase}, {off}'); I(f's_addc_u32 s{dst+1}, s{wsbase+1}, 0')

STAMPS = False
WS_STAMP = 0x8000000
REALTIME = False
def stamp(k, i):
    if not STAMPS: return
    if REALTIME == 2:
        k.I(f's_memtime s[{64+4*i}:{65+4*i}]'); k.I(f's_memrealtime s[{66+4*i}:{67+4*i}]')
        return
    k.I(f's_memrealtime s[{64+2*i}:{65+2*i}]' if REALTIME else f's_memtime s[{64+2*i}:{65+2*i}]')
STAMP_SLOT = {}
def stamp_flush(k, n, wsreg):
    if not STAMPS: return
    if REALTIME == 2: n = 2 * n
    I = k.I
    I('s_waitcnt lgkmcnt(0)')
    off = WS_STAMP + STAMP_SLOT.get(k.name, 0) * 0x40000
    I(f's_add_u32 s100, s{wsreg}, {off}'); I(f's_addc_u32 s101, s{wsreg+1}, 0')
    I('s_mov_b32 s96, s100'); I('s_mov_b32 s97, s101'); I('s_mov_b32 s98, 0x1000000'); I('s_mov_b32 s99, 0x00020000')
    I('v_lshrrev_b32 v200, 6, v0'); I('v_lshl_add_u32 v200, s2, 3, v200')
    I('v_lshlrev_b32 v200, 6, v200')
    for i in range(n):
        I(f'v_mov_b32 v201, s{64+2*i}')
        I(f'buffer_store_dword v201, v200, s[96:99], 0 offen offset:{4*i}')

T1_NS = 4
T1_NOCOMPUTE = False
T1_FREEZE = ''
T1_NODMA = False
T1_NOSWZ = False
T1_XB, T1_WB = 4096, 5120
T1_STAGE = T1_XB + T1_WB
T1_WAVE = T1_NS * T1_STAGE
T1_LDS = 4 * T1_WAVE


def xlane_sum(I, v, tmp):
    I(f'v_mov_b32 v{tmp}, v{v}')
    I(f'v_permlane16_swap_b32 v{v}, v{tmp}')
    I(f'v_add_f32 v{v}, v{v}, v{tmp}')
    I(f'v_mov_b32 v{tmp}, v{v}')
    I(f'v_permlane32_swap_b32 v{v}, v{tmp}')
    I(f'v_add_f32 v{v}, v{v}, v{tmp}')

def round_bf16(I, v, tmp):
    I(f'v_cvt_pk_bf16_f32 v{tmp}, v{v}, v{v}')
    I(f'v_lshlrev_b32 v{v}, 16, v{tmp}')

def ln_scalars(I, vsum, vsq, vmean, vrden, tmp):
    I(f'v_mul_f32 v{vmean}, {f32bits(1.0/D):#x}, v{vsum}')
    I(f'v_mul_f32 v{tmp}, {f32bits(1.0/D):#x}, v{vsq}')
    I(f'v_fma_f32 v{tmp}, -v{vmean}, v{vmean}, v{tmp}')
    I(f'v_max_f32 v{tmp}, 0, v{tmp}')
    round_bf16(I, tmp, tmp + 1)
    I(f'v_add_f32 v{tmp}, {f32bits(1e-5):#x}, v{tmp}')
    round_bf16(I, tmp, tmp + 1)
    I(f'v_sqrt_f32 v{tmp}, v{tmp}')
    round_bf16(I, tmp, tmp + 1)
    I(f'v_rcp_f32 v{vrden}, v{tmp}')
    round_bf16(I, vmean, tmp + 1)

def t1_lds(mode): return 4 * (20480 if mode == 'g1' else T1_NS * T1_STAGE)

def t1_kernel(name, mode, layer):
    k = Kernel(name); I = k.I; C = k.C
    NS = 2 if mode == 'g1' else T1_NS
    T1_WAVE = 20480 if mode == 'g1' else NS * T1_STAGE
    RING = NS * T1_STAGE
    last_layer = (layer == 1)
    if mode == 'g1':   K = D;  NCH = 9
    elif mode == 'g2': K = D;  NCH = 8
    else:              K = DF; NCH = 8
    NWG = 32 * NCH
    KS = K // 32
    pitchX = K * 2
    pitchW = D * 2
    sX, sW, sO, sR = 4, 8, 12, 16
    sWAVE, sLDSW, sCNT, sKX, sKW, sLD, sRD, sTMP, sR0, sN0, sCH = 20, 21, 22, 23, 24, 25, 26, 27, 28, 29, 30
    sP = 32
    sW2 = 48
    vLANE = 1
    vXOFF = 2
    vWOFF = 6
    vXRD, vWRD = 11, 12
    vXA, vWA = 13, 14
    vT = 15
    vB = 24
    vA = 40
    vACC = 60
    vST = 140
    vONE = 153
    vRES = 154
    def acc(rt, ft): b = vACC + (rt * 5 + ft) * 4; return f'v[{b}:{b+3}]'
    END = 'L_end_' + name

    I(f's_cmp_ge_u32 s2, {NWG}'); I('s_cbranch_scc1 ' + END)
    stamp(k, 0)
    load_ptr(I, sP, 'ws')
    if mode == 'g1':
        load_ptr(I, sP + 2, 'x'); load_ptr(I, sP + 4, 'wq'); load_ptr(I, sP + 6, 'wk'); load_ptr(I, sP + 8, 'wv')
    elif mode == 'g2':
        load_ptr(I, sP + 2, 'x'); load_ptr(I, sP + 4, 'wo')
    else:
        load_ptr(I, sP + 4, 'wd'); load_ptr(I, sP + 6, 'out')
    I(f'v_lshrrev_b32 v{vT}, 6, v0')
    I(f'v_and_b32 v{vLANE}, 63, v0')
    I(f'v_readfirstlane_b32 s{sWAVE}, v{vT}')
    I(f's_and_b32 s{sR0}, s2, 7'); I(f's_lshr_b32 s{sCH}, s2, 3')
    I(f's_and_b32 s{sTMP}, s{sCH}, 3'); I(f's_lshr_b32 s{sCH}, s{sCH}, 2')
    I(f's_lshl_b32 s{sR0}, s{sR0}, 2'); I(f's_add_u32 s{sR0}, s{sR0}, s{sTMP}')
    I(f's_lshl_b32 s{sR0}, s{sR0}, 6')
    I(f's_mul_i32 s{sN0}, s{sCH}, 80')
    I('s_waitcnt lgkmcnt(0)')
    if mode == 'g1':
        if layer == 0: srd(I, sX, sP + 2, sP + 3, XBYTES)
        else:
            ws_ptr(I, sP + 10, sP, WS_X2); srd(I, sX, sP + 10, sP + 11, XBYTES)
        srd(I, sW, sP + 4, sP + 5, D * D * 2)
        ws_ptr(I, sP + 10, sP, WS_Q); srd(I, sO, sP + 10, sP + 11, XBYTES)
    elif mode == 'g2':
        ws_ptr(I, sP + 10, sP, WS_O); srd(I, sX, sP + 10, sP + 11, XBYTES)
        srd(I, sW, sP + 4, sP + 5, D * D * 2)
        ws_ptr(I, sP + 10, sP, WS_X1); srd(I, sO, sP + 10, sP + 11, XBYTES)
        if layer == 0: srd(I, sR, sP + 2, sP + 3, XBYTES)
        else:
            ws_ptr(I, sP + 10, sP, WS_X2); srd(I, sR, sP + 10, sP + 11, XBYTES)
    else:
        ws_ptr(I, sP + 10, sP, WS_H); srd(I, sX, sP + 10, sP + 11, HBYTES)
        srd(I, sW, sP + 4, sP + 5, DF * D * 2)
        if last_layer: srd(I, sO, sP + 6, sP + 7, XBYTES)
        else:
            ws_ptr(I, sP + 10, sP, WS_X2); srd(I, sO, sP + 10, sP + 11, XBYTES)
        ws_ptr(I, sP + 10, sP, WS_X1); srd(I, sR, sP + 10, sP + 11, XBYTES)
    I(f's_sub_u32 s{sCNT}, {KS + 3}, s{sWAVE}'); I(f's_lshr_b32 s{sCNT}, s{sCNT}, 2')
    I(f's_mul_i32 s{sTMP}, s{sWAVE}, {KS >> 2}')
    I(f's_min_u32 s{sKX}, s{sWAVE}, {KS & 3}'); I(f's_add_u32 s{sTMP}, s{sTMP}, s{sKX}')
    I(f's_lshl_b32 s{sKX}, s{sTMP}, 6')
    I(f's_mul_i32 s{sKW}, s{sTMP}, {32 * pitchW}')
    I(f's_mul_i32 s{sLDSW}, s{sWAVE}, {T1_WAVE}')
    C('X DMA offsets: row = 16j + (lane>>2), piece = (lane&3) ^ ((row>>1)&3)')
    I(f'v_lshrrev_b32 v{vT}, 2, v{vLANE}')
    I(f'v_lshrrev_b32 v{vT+1}, 3, v{vLANE}')
    if T1_NOSWZ: I(f'v_mov_b32 v{vT+1}, v{vLANE}')
    else: I(f'v_xor_b32 v{vT+1}, v{vT+1}, v{vLANE}')
    I(f'v_and_b32 v{vT+1}, 3, v{vT+1}')
    I(f'v_add_u32 v{vT}, s{sR0}, v{vT}')
    I(f's_mov_b32 s{sTMP}, {pitchX}')
    I(f'v_mul_lo_u32 v{vT}, v{vT}, s{sTMP}')
    I(f'v_lshl_add_u32 v{vXOFF}, v{vT+1}, 4, v{vT}')
    for j in range(1, 4):
        I(f'v_add_u32 v{vXOFF+j}, {16 * j * pitchX}, v{vXOFF}')
    C('W DMA offsets: q = 64j+lane ; krow = q//10 ; pc = q%10')
    for j in range(5):
        I(f'v_add_u32 v{vT}, {64 * j}, v{vLANE}')
        I(f'v_mul_u32_u24 v{vT+1}, 6554, v{vT}')
        I(f'v_lshrrev_b32 v{vT+1}, 16, v{vT+1}')
        I(f'v_mul_u32_u24 v{vT+2}, 10, v{vT+1}')
        I(f'v_sub_u32 v{vT+2}, v{vT}, v{vT+2}')
        I(f'v_mul_u32_u24 v{vT+1}, {pitchW}, v{vT+1}')
        I(f'v_lshl_add_u32 v{vWOFF+j}, v{vT+2}, 4, v{vT+1}')
    I(f's_lshl_b32 s{sTMP}, s{sN0}, 1')
    for j in range(5):
        I(f'v_add_u32 v{vWOFF+j}, s{sTMP}, v{vWOFF+j}')
    C('B frag: row=l&15, slab=l>>4 -> row*64 + (slab ^ ((row>>1)&3))*16')
    I(f'v_and_b32 v{vT}, 15, v{vLANE}')
    I(f'v_lshrrev_b32 v{vT+1}, 4, v{vLANE}')
    I(f'v_lshrrev_b32 v{vT+2}, 1, v{vT}')
    I(f'v_xor_b32 v{vT+2}, v{vT+2}, v{vT+1}')
    I(f'v_and_b32 v{vT+2}, 3, v{vT+2}')
    I(f'v_lshlrev_b32 v{vT+2}, 4, v{vT+2}')
    I(f'v_lshl_add_u32 v{vXRD}, v{vT}, 6, v{vT+2}')
    I(f'v_add_u32 v{vXRD}, s{sLDSW}, v{vXRD}')
    C('A frag tr read: g=l>>4,i=l&15 -> XB + (8g+(i>>2))*pitch + (i&3)*8')
    I(f'v_lshrrev_b32 v{vT+2}, 2, v{vT}')
    I(f'v_lshl_add_u32 v{vT+2}, v{vT+1}, 3, v{vT+2}')
    I(f'v_mov_b32 v{vT+4}, v{vT+2}')
    I(f'v_mul_u32_u24 v{vT+2}, 160, v{vT+2}')
    I(f'v_and_b32 v{vT+3}, 3, v{vLANE}')
    I(f'v_lshl_add_u32 v{vWRD}, v{vT+3}, 3, v{vT+2}')
    I(f'v_add_u32 v{vWRD}, {T1_XB}, v{vWRD}')
    I(f'v_add_u32 v{vWRD}, s{sLDSW}, v{vWRD}')
    for r in range(80): I(f'v_mov_b32 v{vACC+r}, 0')
    if mode == 'g1':
        for r in range(13): I(f'v_mov_b32 v{vST+r}, 0')
        I(f'v_mov_b32 v{vONE}, 0x3f803f80')
    I(f's_mov_b32 s{sLD}, s{sLDSW}')
    I(f's_mov_b32 s{sRD}, 0')

    def emit_loop(tag, kv):
        nft = 4 if kv else 5
        ftoff = [0, 32, 2048, 2080] if kv else [0, 32, 64, 96, 128]
        second = 4 * 40 if kv else 640
        ndma = 4 + (4 if kv else 5)
        def issue_stage():
            for j in range(4):
                if T1_NODMA:
                    I(f'buffer_load_dwordx4 v[{vACC+4*j}:{vACC+4*j+3}], v{vXOFF+j}, s[{sX}:{sX+3}], s{sKX} offen'); continue
                I(f's_add_u32 m0, s{sLD}, {j * 1024}')
                I(f'buffer_load_dwordx4 v{vXOFF+j}, s[{sX}:{sX+3}], s{sKX} offen lds')
            if not kv:
                for j in range(5):
                    if T1_NODMA:
                        I(f'buffer_load_dwordx4 v[{vACC+16+4*j}:{vACC+16+4*j+3}], v{vWOFF+j}, s[{sW}:{sW+3}], s{sKW} offen'); continue
                    I(f's_add_u32 m0, s{sLD}, {T1_XB + j * 1024}')
                    I(f'buffer_load_dwordx4 v{vWOFF+j}, s[{sW}:{sW+3}], s{sKW} offen lds')
                if 'w' not in T1_FREEZE: I(f's_add_u32 s{sKW}, s{sKW}, {32 * pitchW}')
            else:
                for m, sr in enumerate((sW, sW2)):
                    for j in range(2):
                        I(f's_add_u32 m0, s{sLD}, {T1_XB + m * 2048 + j * 1024}')
                        I(f'buffer_load_dwordx4 v{vWOFF+j}, s[{sr}:{sr+3}], s{sKW} offen lds')
                I(f's_add_u32 s{sKW}, s{sKW}, 1280')
            if 'x' not in T1_FREEZE: I(f's_add_u32 s{sKX}, s{sKX}, 64')
            I(f's_add_u32 s{sLD}, s{sLD}, {T1_STAGE}')
            I(f's_add_u32 s{sTMP}, s{sLDSW}, {RING}')
            I(f's_cmp_ge_u32 s{sLD}, s{sTMP}')
            I(f's_cselect_b32 s{sLD}, s{sLDSW}, s{sLD}')
        stamp(k, 1)
        for st in range(NS - 1): issue_stage()
        stamp(k, 2)
        k.L(f'L_loop{tag}_' + name)
        issue_stage()
        I(f's_waitcnt vmcnt({(NS - 1) * ndma})')
        I(f'v_add_u32 v{vXA}, s{sRD}, v{vXRD}')
        I(f'v_add_u32 v{vWA}, s{sRD}, v{vWRD}')
        for rt in range(4):
            if T1_NOCOMPUTE: break
            I(f'ds_read_b128 v[{vB+4*rt}:{vB+4*rt+3}], v{vXA} offset:{rt*1024}')
        for ft in range(nft):
            if T1_NOCOMPUTE: break
            I(f'ds_read_b64_tr_b16 v[{vA+4*ft}:{vA+4*ft+1}], v{vWA} offset:{ftoff[ft]}')
            I(f'ds_read_b64_tr_b16 v[{vA+4*ft+2}:{vA+4*ft+3}], v{vWA} offset:{ftoff[ft]+second}')
        I(f's_add_u32 s{sRD}, s{sRD}, {T1_STAGE}')
        I(f's_cmp_ge_u32 s{sRD}, {RING}')
        I(f's_cselect_b32 s{sRD}, 0, s{sRD}')
        I('s_waitcnt lgkmcnt(0)')
        for rt in range(4):
            for ft in range(nft):
                if T1_NOCOMPUTE: break
                I(f'v_mfma_f32_16x16x32_bf16 {acc(rt,ft)}, v[{vA+4*ft}:{vA+4*ft+3}], v[{vB+4*rt}:{vB+4*rt+3}], {acc(rt,ft)}')
        if mode == 'g1':
            for rt in range(4):
                for j in range(4):
                    I(f'v_dot2_f32_bf16 v{vST+rt}, v{vB+4*rt+j}, v{vONE}, v{vST+rt}')
                    I(f'v_dot2_f32_bf16 v{vST+4+rt}, v{vB+4*rt+j}, v{vB+4*rt+j}, v{vST+4+rt}')
            for ft in range(nft):
                for j in range(4):
                    I(f'v_dot2_f32_bf16 v{vST+8+ft}, v{vA+4*ft+j}, v{vONE}, v{vST+8+ft}')
        I(f's_sub_u32 s{sCNT}, s{sCNT}, 1')
        I(f's_cmp_lg_u32 s{sCNT}, 0')
        I(f's_cbranch_scc1 L_loop{tag}_' + name)

    if mode == 'g1':
        I(f's_cmp_eq_u32 s{sCH}, 8'); I(f's_cbranch_scc1 L_kv_' + name)
    if mode in ('g2', 'g4'):
        C('residual loads issued early')
        I(f'v_and_b32 v{vT}, 15, v{vLANE}')
        I(f'v_lshrrev_b32 v{vT+1}, 4, v{vLANE}')
        I(f's_lshl_b32 s{sTMP}, s{sWAVE}, 4'); I(f's_add_u32 s{sTMP}, s{sTMP}, s{sR0}')
        I(f'v_add_u32 v{vT}, s{sTMP}, v{vT}')
        I(f'v_mul_u32_u24 v{vT}, 1280, v{vT}')
        I(f'v_lshl_add_u32 v{vT+1}, v{vT+1}, 3, v{vT}')
        I(f's_lshl_b32 s{sTMP}, s{sN0}, 1')
        I(f'v_add_u32 v{vT+8}, s{sTMP}, v{vT+1}')
        for ft in range(5):
            I(f'buffer_load_dwordx2 v[{vRES+2*ft}:{vRES+2*ft+1}], v{vT+8}, s[{sR}:{sR+3}], 0 offen offset:{ft*32}')
    emit_loop('', False)
    if mode == 'g1':
        I(f's_branch L_red_' + name)
        k.L('L_kv_' + name)
        C('kv chunk: W SRDs = wk, wv ; DMA offsets lane*16 (+1024), tr pitch 40')
        srd(I, sW, sP + 6, sP + 7, D * DH * 2)
        srd(I, sW2, sP + 8, sP + 9, D * DH * 2)
        I(f'v_lshlrev_b32 v{vWOFF}, 4, v{vLANE}')
        I(f'v_add_u32 v{vWOFF+1}, 1024, v{vWOFF}')
        I(f's_mul_i32 s{sTMP}, s{sWAVE}, {KS >> 2}')
        I(f's_mul_i32 s{sKW}, s{sTMP}, 1280')
        I(f'v_mul_u32_u24 v{vT+2}, 40, v{vT+4}')
        I(f'v_lshl_add_u32 v{vWRD}, v{vT+3}, 3, v{vT+2}')
        I(f'v_add_u32 v{vWRD}, {T1_XB}, v{vWRD}')
        I(f'v_add_u32 v{vWRD}, s{sLDSW}, v{vWRD}')
        emit_loop('kv', True)
        k.L('L_red_' + name)
    stamp(k, 3)
    C('reduce: every wave dumps its partial tiles into its own ring area')
    I('s_waitcnt vmcnt(0)')
    I(f'v_lshlrev_b32 v{vT}, 4, v{vLANE}')
    I(f'v_add_u32 v{vT}, s{sLDSW}, v{vT}')
    for t in range(20):
        b = vACC + 4 * t
        I(f'ds_write_b128 v{vT}, v[{b}:{b+3}] offset:{t*1024}')
    if mode == 'g1':
        C('stats go into this wave own (unpublished) tile slots: area + w*5120 + r*256')
        I(f's_mul_i32 s{sTMP}, s{sWAVE}, 5120'); I(f's_add_u32 s{sTMP}, s{sTMP}, s{sLDSW}')
        I(f'v_lshlrev_b32 v{vT+1}, 2, v{vLANE}')
        I(f'v_add_u32 v{vT+1}, s{sTMP}, v{vT+1}')
        for r in range(13):
            I(f'ds_write_b32 v{vT+1}, v{vST+r} offset:{r*256}')
        C('move own tiles into fixed registers (own slot is overwritten by the stats)')
        for w_ in range(1, 4):
            I(f's_cmp_lg_u32 s{sWAVE}, {w_}'); I(f's_cbranch_scc1 L_own{w_}_' + name)
            for r in range(20): I(f'v_mov_b32 v{vACC+r}, v{vACC+20*w_+r}')
            k.L(f'L_own{w_}_' + name)
    I('s_waitcnt lgkmcnt(0)')
    stamp(k, 4)
    I('s_barrier')
    stamp(k, 5)
    C('wave w gathers row-tile w from the 4 areas')
    I(f'v_lshlrev_b32 v{vT}, 4, v{vLANE}')
    I(f's_mul_i32 s{sTMP}, s{sWAVE}, 5120')
    I(f'v_add_u32 v{vT}, s{sTMP}, v{vT}')
    for u in range(1, 4):
        I(f'v_add_u32 v{vT+u}, {u*T1_WAVE}, v{vT}')
    vF = vACC
    vTMPF = vACC + 20
    if mode == 'g1':
        C('read the 3 other areas (u = w+1, w+2, w+3 mod 4); own part is already in vF')
        for u in range(1, 4):
            I(f's_add_u32 s{sTMP}, s{sWAVE}, {u}'); I(f's_and_b32 s{sTMP}, s{sTMP}, 3'); I(f's_mul_i32 s{sTMP}, s{sTMP}, {T1_WAVE}')
            I(f'v_add_u32 v{vT+u}, s{sTMP}, v{vT}')
        for u in range(1, 4):
            dst = vTMPF + (u - 1) * 20
            for ft in range(5):
                I(f'ds_read_b128 v[{dst+4*ft}:{dst+4*ft+3}], v{vT+u} offset:{ft*1024}')
    else:
      for u in range(4):
        dst = vF if u == 0 else vTMPF + (u - 1) * 20
        for ft in range(5):
            I(f'ds_read_b128 v[{dst+4*ft}:{dst+4*ft+3}], v{vT+u} offset:{ft*1024}')
    if mode == 'g1':
        C('stats: sum/sq of row tile w (regs w, 4+w) and colsums (regs 8..12) from 4 areas')
        I(f'v_lshlrev_b32 v{vT+4}, 2, v{vLANE}')
        I(f's_lshl_b32 s{sTMP}, s{sWAVE}, 8')
        I(f'v_add_u32 v{vT+4}, s{sTMP}, v{vT+4}')
        for u in range(4):
            I(f'v_add_u32 v{vT+5}, {u*T1_WAVE + u*5120}, v{vT+4}')
            I(f'ds_read_b32 v{vST+u}, v{vT+5}')
            I(f'ds_read_b32 v{vST+4+u}, v{vT+5} offset:1024')
        I(f'v_lshlrev_b32 v{vT+4}, 2, v{vLANE}')
        for u in range(4):
            I(f'v_add_u32 v{vT+5}, {u*T1_WAVE + u*5120 + 2048}, v{vT+4}')
            for c in range(5):
                I(f'ds_read_b32 v{vA+5*u+c}, v{vT+5} offset:{c*256}')
    I('s_waitcnt lgkmcnt(0)')
    for u in range(1, 4):
        for r in range(20):
            I(f'v_add_f32 v{vF+r}, v{vF+r}, v{vTMPF+(u-1)*20+r}')
    k._env = dict(locals())
    stamp(k, 6)
    if mode in ('g2', 'g4'):
        epi_residual(k, mode)
        stamp(k, 7)
        stamp_flush(k, 8, sP)
    else:
        epi_qkv(k)
        stamp(k, 7)
        stamp_flush(k, 8, sP)
    k.L(END)
    I('s_endpgm')
    return k

def epi_residual(k, mode):
    e = k._env; I = k.I; C = k.C
    vF, vRES, vT, vLANE, vST = e['vF'], e['vRES'], e['vT'], e['vLANE'], e['vST']
    sO, sCH, sP, sTMP = e['sO'], e['sCH'], e['sP'], e['sTMP']
    vP = e['vTMPF']
    vMK = vP + 20
    I('s_waitcnt vmcnt(0)')
    I(f'v_mov_b32 v{vMK}, 0xffff0000')
    if mode == 'g2':
        I(f'v_mov_b32 v{vST}, 0'); I(f'v_mov_b32 v{vST+1}, 0')
    for ft in range(5):
        for h in range(2):
            r = vRES + 2 * ft + h
            a0, a1 = vF + 4 * ft + 2 * h, vF + 4 * ft + 2 * h + 1
            I(f'v_lshlrev_b32 v{vT+2}, 16, v{r}')
            I(f'v_and_b32 v{vT+3}, v{vMK}, v{r}')
            I(f'v_add_f32 v{a0}, v{a0}, v{vT+2}')
            I(f'v_add_f32 v{a1}, v{a1}, v{vT+3}')
            I(f'v_cvt_pk_bf16_f32 v{vP+2*ft+h}, v{a0}, v{a1}')
            if mode == 'g2':
                p = vP + 2 * ft + h
                I(f'v_lshlrev_b32 v{vT+2}, 16, v{p}')
                I(f'v_and_b32 v{vT+3}, v{vMK}, v{p}')
                I(f'v_add_f32 v{vST}, v{vST}, v{vT+2}')
                I(f'v_fmac_f32 v{vST+1}, v{vT+2}, v{vT+2}')
                I(f'v_add_f32 v{vST}, v{vST}, v{vT+3}')
                I(f'v_fmac_f32 v{vST+1}, v{vT+3}, v{vT+3}')
        I(f'buffer_store_dwordx2 v[{vP+2*ft}:{vP+2*ft+1}], v{vT+8}, s[{sO}:{sO+3}], 0 offen offset:{ft*32}')
    if mode == 'g2':
        C('row-chunk stats -> WS_ST[(row*8+ch)*8]')
        xlane_sum(I, vST, vT + 2); xlane_sum(I, vST + 1, vT + 2)
        ws_ptr(I, sP + 10, sP, WS_ST); srd(I, sO, sP + 10, sP + 11, S * 8 * 8)
        I(f'v_and_b32 v{vT}, 15, v{vLANE}')
        I(f's_lshl_b32 s{sTMP}, s{e["sWAVE"]}, 4'); I(f's_add_u32 s{sTMP}, s{sTMP}, s{e["sR0"]}')
        I(f'v_add_u32 v{vT}, s{sTMP}, v{vT}')
        I(f'v_lshl_add_u32 v{vT}, v{vT}, 3, s{sCH}')
        I(f'v_lshlrev_b32 v{vT}, 3, v{vT}')
        I(f'v_cmp_gt_u32 vcc, 16, v{vLANE}')
        I(f's_and_saveexec_b64 s[{sP+12}:{sP+13}], vcc')
        I(f'buffer_store_dwordx2 v[{vST}:{vST+1}], v{vT}, s[{sO}:{sO+3}], 0 offen')
        I(f's_mov_b64 exec, -1')

def epi_qkv(k):
    e = k._env; I = k.I; C = k.C
    vF, vT, vLANE, vST, vA = e['vF'], e['vT'], e['vLANE'], e['vST'], e['vA']
    sO, sCH, sP, sTMP, sWAVE, sR0, sN0 = e['sO'], e['sCH'], e['sP'], e['sTMP'], e['sWAVE'], e['sR0'], e['sN0']
    name = k.name
    vW = e['vTMPF']
    vMEAN, vRDEN, vCS = vW, vW + 1, vW + 4
    vX = vW + 24
    C('row stats: combine 4 wave partials, then across the 4 k-slab lane groups')
    I(f'v_add_f32 v{vST}, v{vST}, v{vST+1}'); I(f'v_add_f32 v{vST+2}, v{vST+2}, v{vST+3}')
    I(f'v_add_f32 v{vST}, v{vST}, v{vST+2}')
    I(f'v_add_f32 v{vST+4}, v{vST+4}, v{vST+5}'); I(f'v_add_f32 v{vST+6}, v{vST+6}, v{vST+7}')
    I(f'v_add_f32 v{vST+4}, v{vST+4}, v{vST+6}')
    xlane_sum(I, vST, vX); xlane_sum(I, vST + 4, vX)
    C('column sums: combine, reduce over lane groups, then permute to the D layout')
    for c in range(5):
        I(f'v_add_f32 v{vA+c}, v{vA+c}, v{vA+5+c}'); I(f'v_add_f32 v{vA+10+c}, v{vA+10+c}, v{vA+15+c}')
        I(f'v_add_f32 v{vA+c}, v{vA+c}, v{vA+10+c}')
        xlane_sum(I, vA + c, vX)
    I(f'v_lshrrev_b32 v{vX}, 4, v{vLANE}')
    I(f'v_lshlrev_b32 v{vX}, 4, v{vX}')
    for ft in range(5):
        for i in range(4):
            I(f'v_add_u32 v{vX+1}, {4*i}, v{vX}')
            I(f'ds_bpermute_b32 v{vCS+4*ft+i}, v{vX+1}, v{vA+ft}')
    ln_scalars(I, vST, vST + 4, vMEAN, vRDEN, vX + 2)
    I('s_waitcnt lgkmcnt(0)')
    C('y = (acc - mean*colsum) * rden')
    for r in range(20):
        I(f'v_fma_f32 v{vF+r}, -v{vMEAN}, v{vCS+r}, v{vF+r}')
        I(f'v_mul_f32 v{vF+r}, v{vF+r}, v{vRDEN}')
    C('row index of this lane')
    I(f'v_and_b32 v{vT}, 15, v{vLANE}')
    I(f's_lshl_b32 s{sTMP}, s{sWAVE}, 4'); I(f's_add_u32 s{sTMP}, s{sTMP}, s{sR0}')
    I(f'v_add_u32 v{vT}, s{sTMP}, v{vT}')
    I(f'v_lshrrev_b32 v{vT+1}, 4, v{vLANE}')
    I(f's_cmp_eq_u32 s{sCH}, 8'); I(f's_cbranch_scc1 L_epikv_{name}')
    C('---- Q: scale and store row-major')
    I(f'v_mov_b32 v{vX}, {f32bits(QSCALE):#x}')
    for r in range(20): I(f'v_mul_f32 v{vF+r}, v{vF+r}, v{vX}')
    I(f'v_mul_u32_u24 v{vT+2}, 1280, v{vT}')
    I(f'v_lshl_add_u32 v{vT+2}, v{vT+1}, 3, v{vT+2}')
    I(f's_lshl_b32 s{sTMP}, s{sN0}, 1')
    I(f'v_add_u32 v{vT+2}, s{sTMP}, v{vT+2}')
    for ft in range(5):
        I(f'v_cvt_pk_bf16_f32 v{vW+44+2*ft}, v{vF+4*ft}, v{vF+4*ft+1}')
        I(f'v_cvt_pk_bf16_f32 v{vW+44+2*ft+1}, v{vF+4*ft+2}, v{vF+4*ft+3}')
        I(f'buffer_store_dwordx2 v[{vW+44+2*ft}:{vW+44+2*ft+1}], v{vT+2}, s[{sO}:{sO+3}], 0 offen offset:{ft*32}')
    I(f's_branch L_end_{name}')
    k.L(f'L_epikv_{name}')
    C('---- K/V images')
    ws_ptr(I, sP + 10, sP, WS_KV); srd(I, sO, sP + 10, sP + 11, 64 * 4096)
    C('fix constants: K dims 20..31 and V rows 20..31')
    I(f'v_cmp_eq_u32 vcc, 1, v{vT+1}')
    I(f'v_cndmask_b32 v{vX}, 0, 1.0, vcc')
    I(f'v_cmp_eq_u32 vcc, 0, v{vT+1}')
    for ft in (1, 3):
        I(f'v_cndmask_b32 v{vF+4*ft}, v{vX}, v{vF+4*ft}, vcc')
        for i in (1, 2, 3):
            I(f'v_cndmask_b32 v{vF+4*ft+i}, 0, v{vF+4*ft+i}, vcc')
    C('tile base = (key>>5)*4096 ; kk = key&31')
    I(f'v_lshrrev_b32 v{vT+2}, 5, v{vT}')
    I(f'v_lshlrev_b32 v{vT+2}, 12, v{vT+2}')
    I(f'v_and_b32 v{vT+3}, 31, v{vT}')
    C('K: addr = base + op*1024 + (kk + 32*(g>>1))*16 + (g&1)*8')
    I(f'v_lshrrev_b32 v{vT+4}, 1, v{vT+1}')
    I(f'v_lshl_add_u32 v{vT+4}, v{vT+4}, 5, v{vT+3}')
    I(f'v_lshl_add_u32 v{vT+4}, v{vT+4}, 4, v{vT+2}')
    I(f'v_and_b32 v{vT+5}, 1, v{vT+1}')
    I(f'v_lshl_add_u32 v{vT+4}, v{vT+5}, 3, v{vT+4}')
    for ft in (0, 1):
        I(f'v_cvt_pk_bf16_f32 v{vW+44+2*ft}, v{vF+4*ft}, v{vF+4*ft+1}')
        I(f'v_cvt_pk_bf16_f32 v{vW+44+2*ft+1}, v{vF+4*ft+2}, v{vF+4*ft+3}')
        I(f'buffer_store_dwordx2 v[{vW+44+2*ft}:{vW+44+2*ft+1}], v{vT+4}, s[{sO}:{sO+3}], 0 offen offset:{ft*1024}')
    C('V: addr = base + 2048 + j*1024 + (d + 32*hh)*16 + jj*2 ; j=kk>>4, r=kk&15, jj=(r>>3)*4+(r&3), hh=(r>>2)&1')
    I(f'v_lshrrev_b32 v{vT+4}, 4, v{vT+3}')
    I(f'v_lshl_add_u32 v{vT+4}, v{vT+4}, 10, v{vT+2}')
    I(f'v_add_u32 v{vT+4}, 2048, v{vT+4}')
    I(f'v_lshrrev_b32 v{vT+5}, 2, v{vT+3}'); I(f'v_and_b32 v{vT+5}, 1, v{vT+5}')
    I(f'v_lshl_add_u32 v{vT+4}, v{vT+5}, 9, v{vT+4}')
    I(f'v_lshrrev_b32 v{vT+5}, 3, v{vT+3}'); I(f'v_and_b32 v{vT+5}, 1, v{vT+5}')
    I(f'v_and_b32 v{vT+6}, 3, v{vT+3}')
    I(f'v_lshl_add_u32 v{vT+5}, v{vT+5}, 2, v{vT+6}')
    I(f'v_lshl_add_u32 v{vT+4}, v{vT+5}, 1, v{vT+4}')
    I(f'v_lshl_add_u32 v{vT+4}, v{vT+1}, 6, v{vT+4}')
    for ft in (2, 3):
        for i in range(4):
            I(f'v_cvt_pk_bf16_f32 v{vX+2}, v{vF+4*ft+i}, v{vF+4*ft+i}')
            I(f'buffer_store_short v{vX+2}, v{vT+4}, s[{sO}:{sO+3}], 0 offen offset:{(ft-2)*256 + i*16}')

AT_CH = 4
AT_NB = 4
AT_CHB = AT_CH * 4096
AT_FLAG = 2 * AT_NB * AT_CHB
AT_LDS = AT_FLAG + 1024
AT_FORCE_FALLBACK = False

def attn_kernel(name):
    k = Kernel(name); I = k.I; C = k.C
    END = 'L_end_' + name
    sQ, sKV, sO = 4, 8, 12
    sWAVE, sHALF, sTMP, sQB, sHEAD, sCNT, sLD, sRD, sSRC, sHB = 20, 21, 22, 23, 24, 25, 26, 27, 28, 29
    sP = 32
    vLANE = 1; vT = 2
    vDMA = 12
    vRDA = 13
    vRDB = 14
    vQF = 16
    vKB = 32
    vVB = 48
    vS = 64
    vPk = 128
    vO = 160
    def qf(ct, f): b = vQF + 8 * ct + 4 * f; return f'v[{b}:{b+3}]'
    def kfr(set_, j): b = vKB + 8 * set_ + 4 * j; return f'v[{b}:{b+3}]'
    def vfr(set_, j): b = vVB + 8 * set_ + 4 * j; return f'v[{b}:{b+3}]'
    def st(set_, ct): b = vS + 32 * set_ + 16 * ct; return f'v[{b}:{b+15}]'
    def oacc(ct): b = vO + 16 * ct; return f'v[{b}:{b+15}]'
    def pk(set_, ct, h): b = vPk + 16 * set_ + 8 * ct + 4 * h; return f'v[{b}:{b+3}]'

    I('s_cmp_ge_u32 s2, 256'); I('s_cbranch_scc1 ' + END)
    stamp(k, 0)
    load_ptr(I, sP, 'ws')
    I(f'v_lshrrev_b32 v{vT}, 6, v0'); I(f'v_and_b32 v{vLANE}, 63, v0')
    I(f'v_readfirstlane_b32 s{sWAVE}, v{vT}')
    C('wg -> (xcd, idx): query block qb = xcd*4 + (idx&3), head group hg = idx>>2')
    I(f's_and_b32 s{sQB}, s2, 7'); I(f's_lshr_b32 s{sHEAD}, s2, 3')
    I(f's_and_b32 s{sTMP}, s{sHEAD}, 3'); I(f's_lshr_b32 s{sHEAD}, s{sHEAD}, 2')
    I(f's_lshl_b32 s{sQB}, s{sQB}, 2'); I(f's_add_u32 s{sQB}, s{sQB}, s{sTMP}')
    I(f's_lshl_b32 s{sHEAD}, s{sHEAD}, 2'); I(f's_and_b32 s{sTMP}, s{sWAVE}, 3'); I(f's_add_u32 s{sHEAD}, s{sHEAD}, s{sTMP}')
    I(f's_lshr_b32 s{sHALF}, s{sWAVE}, 2')
    C('DMA setup: each wave of a half copies 4 KB (one key tile) of each chunk')
    I(f's_and_b32 s{sTMP}, s{sWAVE}, 3')
    I(f's_lshl_b32 s{sSRC}, s{sTMP}, 12')
    I(f's_mul_i32 s{sHB}, s{sHALF}, {32 * 4096}')
    I(f's_add_u32 s{sSRC}, s{sSRC}, s{sHB}')
    I(f's_mul_i32 s{sLD}, s{sHALF}, {AT_NB * AT_CHB}')
    I(f's_lshl_b32 s{sTMP}, s{sTMP}, 12'); I(f's_add_u32 s{sLD}, s{sLD}, s{sTMP}')
    I(f'v_lshlrev_b32 v{vDMA}, 4, v{vLANE}')
    I(f's_mul_i32 s{sTMP}, s{sHALF}, {AT_NB * AT_CHB}')
    I(f'v_lshlrev_b32 v{vRDA}, 4, v{vLANE}')
    I(f'v_add_u32 v{vRDA}, s{sTMP}, v{vRDA}')
    I('s_waitcnt lgkmcnt(0)')
    ws_ptr(I, sP + 2, sP, WS_KV); srd(I, sKV, sP + 2, sP + 3, 64 * 4096)
    def dma_chunk(slot):
        I(f's_add_u32 m0, s{sLD}, {slot * AT_CHB}')
        for j in range(4):
            I(f'buffer_load_dwordx4 v{vDMA}, s[{sKV}:{sKV+3}], s{sSRC} offen offset:{j*1024} lds')
        I(f's_add_u32 s{sSRC}, s{sSRC}, {AT_CHB}')
    dma_chunk(0); dma_chunk(1)
    ws_ptr(I, sP + 2, sP, WS_Q); srd(I, sQ, sP + 2, sP + 3, XBYTES)
    ws_ptr(I, sP + 2, sP, WS_O); srd(I, sO, sP + 2, sP + 3, XBYTES)
    C('Q fragments: lane: query = qb*64 + 32ct + (l&31) ; bytes head*40 + (l>>5)*16 ; frag1 = 8 bytes at +32 (lanes<32)')
    I(f'v_and_b32 v{vT}, 31, v{vLANE}')
    I(f's_lshl_b32 s{sTMP}, s{sQB}, 6')
    I(f'v_add_u32 v{vT}, s{sTMP}, v{vT}')
    I(f'v_mul_u32_u24 v{vT}, 1280, v{vT}')
    I(f'v_lshrrev_b32 v{vT+1}, 5, v{vLANE}')
    I(f'v_lshl_add_u32 v{vT}, v{vT+1}, 4, v{vT}')
    I(f's_mul_i32 s{sTMP}, s{sHEAD}, 40')
    I(f'v_add_u32 v{vT}, s{sTMP}, v{vT}')
    I(f'v_add_u32 v{vT+2}, 40960, v{vT}')
    I(f'buffer_load_dwordx4 {qf(0,0)}, v{vT}, s[{sQ}:{sQ+3}], 0 offen')
    I(f'buffer_load_dwordx4 {qf(1,0)}, v{vT+2}, s[{sQ}:{sQ+3}], 0 offen')
    I(f'buffer_load_dwordx2 v[{vQF+4}:{vQF+5}], v{vT}, s[{sQ}:{sQ+3}], 0 offen offset:32')
    I(f'buffer_load_dwordx2 v[{vQF+12}:{vQF+13}], v{vT+2}, s[{sQ}:{sQ+3}], 0 offen offset:32')
    C('K tile 0 fragments straight from global (for the reference max)')
    I(f'buffer_load_dwordx4 {kfr(0,0)}, v{vDMA}, s[{sKV}:{sKV+3}], 0 offen offset:0')
    I(f'buffer_load_dwordx4 {kfr(0,1)}, v{vDMA}, s[{sKV}:{sKV+3}], 0 offen offset:1024')
    dma_chunk(2); dma_chunk(3)
    for ct in range(2):
        b = vQF + 8 * ct
        I(f'v_mov_b32 v{b+6}, 0'); I(f'v_mov_b32 v{b+7}, 0')
    for ct in range(2):
        for r in range(16): I(f'v_mov_b32 v{vO+16*ct+r}, 0')
    I(f'v_cmp_gt_u32 vcc, 32, v{vLANE}')
    I('s_waitcnt vmcnt(8)')
    for ct in range(2):
        b = vQF + 8 * ct
        I(f'v_cndmask_b32 v{b+4}, 0, v{b+4}, vcc'); I(f'v_cndmask_b32 v{b+5}, 0, v{b+5}, vcc')
    C('reference max from key tile 0')
    for ct in range(2):
        I(f'v_mfma_f32_32x32x16_bf16 {st(0,ct)}, {kfr(0,0)}, {qf(ct,0)}, 0')
        I(f'v_mfma_f32_32x32x16_bf16 {st(0,ct)}, {kfr(0,1)}, {qf(ct,1)}, {st(0,ct)}')
    for ct in range(2):
        b = vS + 16 * ct
        m = vT + 4 + ct
        I(f'v_max3_f32 v{m}, v{b}, v{b+1}, v{b+2}')
        for r in range(3, 15, 2):
            I(f'v_max3_f32 v{m}, v{m}, v{b+r}, v{b+r+1}')
        I(f'v_max_f32 v{m}, v{m}, v{b+15}')
        I(f'v_mov_b32 v{vT+6}, v{m}')
        I(f'v_permlane32_swap_b32 v{m}, v{vT+6}')
        I(f'v_max_f32 v{m}, v{m}, v{vT+6}')
        C('bf16-round, negate, insert at dim 20 (low half of frag1 reg 2) for lanes<32')
        I(f'v_sub_f32 v{m}, 0, v{m}')
        I(f'v_cvt_pk_bf16_f32 v{m}, v{m}, v{m}')
        I(f'v_and_b32 v{m}, 0xffff, v{m}')
        I(f'v_cndmask_b32 v{vQF+8*ct+6}, 0, v{m}, vcc')

    NT = 32
    def lds_off(t):
        return ((t // AT_CH) % AT_NB) * AT_CHB + (t % AT_CH) * 4096
    def rd(t, which, dstset):
        off = lds_off(t) + which * 2048
        base = vRDA
        if off >= 65536 - 1024:
            I(f'v_add_u32 v{vRDB}, {off & ~0xfff}, v{vRDA}'); base = vRDB; off &= 0xfff
        for j in range(2):
            dst = kfr(dstset, j) if which == 0 else vfr(dstset, j)
            I(f'ds_read_b128 {dst}, v{base} offset:{off + j*1024}')
    def chunk_gate(c):
        I(f's_waitcnt vmcnt({12 if c == 0 else (8 if c == 1 else (4 if c < 7 else 0))})')
        I('s_barrier')
        if c >= 2 and c - 2 + AT_NB < 8: dma_chunk((c - 2) % AT_NB)
    stamp(k, 1)
    sATT = 30
    I(f's_mov_b32 s{sATT}, 0')
    k.L('L_retry_' + name)
    chunk_gate(0)
    rd(0, 0, 0); rd(1, 0, 1)
    I('s_waitcnt lgkmcnt(2)')
    for ct in range(2):
        I(f'v_mfma_f32_32x32x16_bf16 {st(0,ct)}, {kfr(0,0)}, {qf(ct,0)}, 0')
        I(f'v_mfma_f32_32x32x16_bf16 {st(0,ct)}, {kfr(0,1)}, {qf(ct,1)}, {st(0,ct)}')
    for t in range(NT):
        C(f'step {t}')
        if (t + 2) % AT_CH == 0 and t + 2 < NT: chunk_gate((t + 2) // AT_CH)
        nrd = 0
        if t + 2 < NT: rd(t + 2, 0, t % 2); nrd += 2
        rd(t, 1, t % 2); nrd += 2
        mf = []
        if t + 1 < NT:
            s1 = (t + 1) % 2
            for ct in range(2):
                mf.append(f'v_mfma_f32_32x32x16_bf16 {st(s1,ct)}, {kfr(s1,0)}, {qf(ct,0)}, 0')
                mf.append(f'v_mfma_f32_32x32x16_bf16 {st(s1,ct)}, {kfr(s1,1)}, {qf(ct,1)}, {st(s1,ct)}')
        if t >= 1:
            s0 = (t - 1) % 2
            for ct in range(2):
                mf.append(f'v_mfma_f32_32x32x16_bf16 {oacc(ct)}, {vfr(s0,0)}, {pk(s0,ct,0)}, {oacc(ct)}')
                mf.append(f'v_mfma_f32_32x32x16_bf16 {oacc(ct)}, {vfr(s0,1)}, {pk(s0,ct,1)}, {oacc(ct)}')
        va = []
        sc = t % 2
        for ct in range(2):
            b = vS + 32 * sc + 16 * ct
            for r in range(16): va.append(f'v_exp_f32 v{b+r}, v{b+r}')
            for q in range(8):
                va.append(f'v_cvt_pk_bf16_f32 v{vPk+16*sc+8*ct+q}, v{b+2*q}, v{b+2*q+1}')
        I(f's_waitcnt lgkmcnt({nrd})')
        n = len(mf)
        per = (len(va) + n - 1) // n if n else len(va)
        vi = 0
        for m in mf:
            I(m)
            for _ in range(per):
                if vi < len(va): I(va[vi]); vi += 1
        while vi < len(va): I(va[vi]); vi += 1
    I('s_waitcnt lgkmcnt(0)')
    s0 = (NT - 1) % 2
    for ct in range(2):
        I(f'v_mfma_f32_32x32x16_bf16 {oacc(ct)}, {vfr(s0,0)}, {pk(s0,ct,0)}, {oacc(ct)}')
        I(f'v_mfma_f32_32x32x16_bf16 {oacc(ct)}, {vfr(s0,1)}, {pk(s0,ct,1)}, {oacc(ct)}')
    stamp(k, 2)
    C('waves 4-7 dump O acc to LDS; waves 0-3 add, then check l for overflow of the stand-in max')
    I('s_waitcnt vmcnt(0)')
    I('s_barrier')
    I(f's_and_b32 s{sTMP}, s{sWAVE}, 3'); I(f's_lshl_b32 s{sTMP}, s{sTMP}, 13')
    I(f'v_lshlrev_b32 v{vT}, 4, v{vLANE}'); I(f'v_add_u32 v{vT}, s{sTMP}, v{vT}')
    I(f's_cmp_eq_u32 s{sHALF}, 0'); I(f's_cbranch_scc1 L_lo_' + name)
    for ct in range(2):
        for q in range(4):
            b_ = vO + 16 * ct + 4 * q
            I(f'ds_write_b128 v{vT}, v[{b_}:{b_+3}] offset:{(ct*4+q)*1024}')
    I('s_waitcnt lgkmcnt(0)')
    I('s_barrier')
    I('s_branch L_flag_' + name)
    k.L('L_lo_' + name)
    I('s_barrier')
    for ct in range(2):
        for q in range(4):
            b_ = vS + 16 * ct + 4 * q
            I(f'ds_read_b128 v[{b_}:{b_+3}], v{vT} offset:{(ct*4+q)*1024}')
    I('s_waitcnt lgkmcnt(0)')
    for ct in range(2):
        for r in range(16):
            I(f'v_add_f32 v{vO+16*ct+r}, v{vO+16*ct+r}, v{vS+16*ct+r}')
    C('bad = any column with !(l < 2^100)  (inf/NaN included); l sits in lanes>=32')
    I(f'v_mov_b32 v{vT+1}, {f32bits(2.0**100):#x}')
    I(f'v_cmp_nlt_f32 vcc, v{vO+8}, v{vT+1}')
    I(f's_mov_b32 s{sTMP}, vcc_hi')
    I(f'v_cmp_nlt_f32 vcc, v{vO+24}, v{vT+1}')
    I(f's_or_b32 s{sTMP}, s{sTMP}, vcc_hi')
    if AT_FORCE_FALLBACK: I(f's_mov_b32 s{sTMP}, 1')
    I(f'v_mov_b32 v{vT+1}, s{sTMP}')
    I(f's_and_b32 s{sTMP}, s{sWAVE}, 3'); I(f's_lshl_b32 s{sTMP}, s{sTMP}, 2'); I(f's_add_u32 s{sTMP}, s{sTMP}, {AT_FLAG}')
    I(f'v_mov_b32 v{vT+2}, s{sTMP}')
    I(f'ds_write_b32 v{vT+2}, v{vT+1}')
    k.L('L_flag_' + name)
    I('s_waitcnt lgkmcnt(0)')
    I('s_barrier')
    I(f'v_mov_b32 v{vT+2}, {AT_FLAG}')
    I(f'ds_read_b128 v[{vT+4}:{vT+7}], v{vT+2}')
    I('s_waitcnt lgkmcnt(0)')
    I(f'v_or_b32 v{vT+4}, v{vT+4}, v{vT+5}'); I(f'v_or_b32 v{vT+6}, v{vT+6}, v{vT+7}'); I(f'v_or_b32 v{vT+4}, v{vT+4}, v{vT+6}')
    I(f'v_readfirstlane_b32 s{sTMP}, v{vT+4}')
    I(f's_cmp_eq_u32 s{sTMP}, 0'); I(f's_cbranch_scc1 L_ok_' + name)
    I(f's_cmp_lg_u32 s{sATT}, 0'); I(f's_cbranch_scc1 L_ok_' + name)
    C('---- fallback: exact row max over all keys, then redo the main loop with it')
    I(f's_mov_b32 s{sATT}, 1')
    I('s_barrier')
    def reset_dma():
        I(f's_and_b32 s{sTMP}, s{sWAVE}, 3'); I(f's_lshl_b32 s{sSRC}, s{sTMP}, 12'); I(f's_add_u32 s{sSRC}, s{sSRC}, s{sHB}')
        for c in range(4): dma_chunk(c)
    reset_dma()
    for ct in range(2):
        I(f'v_mov_b32 v{vQF+8*ct+6}, 0')
        I(f'v_mov_b32 v{vT+8+ct}, 0xff800000')
    for c in range(8):
        I(f's_waitcnt vmcnt({12 if c == 0 else (8 if c == 1 else (4 if c < 7 else 0))})')
        I('s_barrier')
        if c >= 2 and c + 2 < 8: dma_chunk((c - 2) % AT_NB)
        for tl in range(AT_CH):
            t = c * AT_CH + tl
            rd(t, 0, 0)
            I('s_waitcnt lgkmcnt(0)')
            for ct in range(2):
                I(f'v_mfma_f32_32x32x16_bf16 {st(0,ct)}, {kfr(0,0)}, {qf(ct,0)}, 0')
                I(f'v_mfma_f32_32x32x16_bf16 {st(0,ct)}, {kfr(0,1)}, {qf(ct,1)}, {st(0,ct)}')
            for ct in range(2):
                b_ = vS + 16 * ct; m = vT + 8 + ct
                for r in range(0, 16, 2):
                    I(f'v_max3_f32 v{m}, v{m}, v{b_+r}, v{b_+r+1}')
    C('combine lane halves, then the two key halves through LDS')
    I('s_waitcnt vmcnt(0)')
    I('s_barrier')
    for ct in range(2):
        m = vT + 8 + ct
        I(f'v_mov_b32 v{vT+6}, v{m}'); I(f'v_permlane32_swap_b32 v{m}, v{vT+6}'); I(f'v_max_f32 v{m}, v{m}, v{vT+6}')
    I(f's_and_b32 s{sTMP}, s{sWAVE}, 3'); I(f's_lshl_b32 s{sTMP}, s{sTMP}, 10'); I(f's_lshl_b32 s{sCNT}, s{sHALF}, 9'); I(f's_add_u32 s{sTMP}, s{sTMP}, s{sCNT}')
    I(f'v_lshlrev_b32 v{vT}, 2, v{vLANE}'); I(f'v_add_u32 v{vT}, s{sTMP}, v{vT}')
    I(f'ds_write_b32 v{vT}, v{vT+8}'); I(f'ds_write_b32 v{vT}, v{vT+9} offset:256')
    I('s_waitcnt lgkmcnt(0)'); I('s_barrier')
    I(f'v_xor_b32 v{vT}, 512, v{vT}')
    I(f'ds_read_b32 v{vT+4}, v{vT}'); I(f'ds_read_b32 v{vT+5}, v{vT} offset:256')
    I('s_waitcnt lgkmcnt(0)')
    I(f'v_cmp_gt_u32 vcc, 32, v{vLANE}')
    for ct in range(2):
        m = vT + 8 + ct
        I(f'v_max_f32 v{m}, v{m}, v{vT+4+ct}')
        I(f'v_sub_f32 v{m}, 0, v{m}')
        I(f'v_cvt_pk_bf16_f32 v{m}, v{m}, v{m}')
        I(f'v_and_b32 v{m}, 0xffff, v{m}')
        I(f'v_cndmask_b32 v{vQF+8*ct+6}, 0, v{m}, vcc')
        for r in range(16): I(f'v_mov_b32 v{vO+16*ct+r}, 0')
    I('s_barrier')
    reset_dma()
    I('s_branch L_retry_' + name)
    k.L('L_ok_' + name)
    I(f's_cmp_lg_u32 s{sHALF}, 0'); I('s_cbranch_scc1 ' + END)
    C('l lives in reg 8 of lanes>=32 (row 20): broadcast to both halves, rcp, scale, pack, store')
    I(f'v_and_b32 v{vT+1}, 31, v{vLANE}')
    I(f's_lshl_b32 s{sTMP}, s{sQB}, 6')
    I(f'v_add_u32 v{vT+1}, s{sTMP}, v{vT+1}')
    I(f'v_mul_u32_u24 v{vT+1}, 1280, v{vT+1}')
    I(f'v_lshrrev_b32 v{vT+2}, 5, v{vLANE}')
    I(f'v_lshl_add_u32 v{vT+1}, v{vT+2}, 3, v{vT+1}')
    I(f's_mul_i32 s{sTMP}, s{sHEAD}, 40')
    I(f'v_add_u32 v{vT+1}, s{sTMP}, v{vT+1}')
    I(f'v_add_u32 v{vT+2}, 40960, v{vT+1}')
    for ct in range(2):
        lreg = vO + 16 * ct + 8
        I(f'v_mov_b32 v{vT+3}, v{lreg}')
        I(f'v_mov_b32 v{vT+4}, v{lreg}')
        I(f'v_permlane32_swap_b32 v{vT+3}, v{vT+4}')
        I(f'v_rcp_f32 v{vT+4}, v{vT+4}')
        for g in range(3):
            b = vO + 16 * ct + 4 * g
            for i in range(4): I(f'v_mul_f32 v{b+i}, v{b+i}, v{vT+4}')
            I(f'v_cvt_pk_bf16_f32 v{vPk+2*g}, v{b}, v{b+1}')
            I(f'v_cvt_pk_bf16_f32 v{vPk+2*g+1}, v{b+2}, v{b+3}')
        addr = vT + 1 + ct
        for g in range(2):
            I(f'buffer_store_dwordx2 v[{vPk+2*g}:{vPk+2*g+1}], v{addr}, s[{sO}:{sO+3}], 0 offen offset:{g*16}')
        I(f'v_cmp_gt_u32 vcc, 32, v{vLANE}')
        I(f's_and_saveexec_b64 s[{sP+12}:{sP+13}], vcc')
        I(f'buffer_store_dwordx2 v[{vPk+4}:{vPk+5}], v{addr}, s[{sO}:{sO+3}], 0 offen offset:32')
        I('s_mov_b64 exec, -1')
    stamp(k, 3)
    stamp_flush(k, 4, sP)
    k.L(END)
    I('s_endpgm')
    return k

G3_NS = 3
G3_XB, G3_WB = 32768, 8192
G3_STAGE = G3_XB + 2 * G3_WB
G3_LDS = G3_NS * G3_STAGE

def g3_kernel(name):
    k = Kernel(name); I = k.I; C = k.C
    END = 'L_end_' + name
    NWG = 216
    sX, sG, sU, sH, sS = 4, 8, 12, 16, 20
    sWAVE, sWR, sWC, sTMP, sR0, sN0, sKX, sKW = 24, 25, 26, 27, 28, 29, 30, 31
    sP = 32
    vLANE = 1; vT = 2
    vXOFF = 10
    vWOFF = 14
    vXRD, vWRD = 15, 16
    vCS = 18
    vXA, vWA, vXS = 20, 22, 24
    vSTL = 26
    vB = 58
    vA = 74
    vACC = 90
    vE = 154
    def acc(gu, rt): b = vACC + (gu * 2 + rt) * 16; return f'v[{b}:{b+15}]'
    def bf(set_, rt): b = vB + set_ * 8 + rt * 4; return b
    def af(set_, gu): b = vA + set_ * 8 + gu * 4; return b

    I(f's_cmp_ge_u32 s2, {NWG}'); I('s_cbranch_scc1 ' + END)
    stamp(k, 0)
    load_ptr(I, sP, 'ws'); load_ptr(I, sP + 2, 'wg'); load_ptr(I, sP + 4, 'wu')
    I(f'v_lshrrev_b32 v{vT}, 6, v0'); I(f'v_and_b32 v{vLANE}, 63, v0')
    I(f'v_readfirstlane_b32 s{sWAVE}, v{vT}')
    C('wg -> row block (wg&7) [one per XCD], column chunk wg>>3 (0..26)')
    I(f's_and_b32 s{sR0}, s2, 7'); I(f's_lshl_b32 s{sR0}, s{sR0}, 8')
    I(f's_lshr_b32 s{sN0}, s2, 3'); I(f's_lshl_b32 s{sN0}, s{sN0}, 6')
    I(f's_lshr_b32 s{sWR}, s{sWAVE}, 1'); I(f's_and_b32 s{sWC}, s{sWAVE}, 1')
    I('s_waitcnt lgkmcnt(0)')
    ws_ptr(I, sP + 6, sP, WS_X1); srd(I, sX, sP + 6, sP + 7, XBYTES)
    srd(I, sG, sP + 2, sP + 3, D * DF * 2); srd(I, sU, sP + 4, sP + 5, D * DF * 2)
    ws_ptr(I, sP + 6, sP, WS_H); srd(I, sH, sP + 6, sP + 7, HBYTES)
    ws_ptr(I, sP + 6, sP, WS_ST); srd(I, sS, sP + 6, sP + 7, S * 64)
    C('row stats loads: row = r0 + 64*wr + 32rt + (l&31) ; 64 B each')
    I(f'v_and_b32 v{vT}, 31, v{vLANE}')
    I(f's_lshl_b32 s{sTMP}, s{sWR}, 6'); I(f's_add_u32 s{sTMP}, s{sTMP}, s{sR0}')
    I(f'v_add_u32 v{vT}, s{sTMP}, v{vT}')
    I(f'v_lshlrev_b32 v{vT+1}, 6, v{vT}')
    for rt in range(2):
        for q in range(4):
            b = vSTL + rt * 16 + q * 4
            I(f'buffer_load_dwordx4 v[{b}:{b+3}], v{vT+1}, s[{sS}:{sS+3}], 0 offen offset:{rt*2048 + q*16}')
    C('X DMA voffsets: instr jj=4w+j covers rows 8jj..8jj+7 ; piece = (l&7) ^ (((j&1)<<2)|(l>>4))')
    I(f'v_lshrrev_b32 v{vT+1}, 3, v{vLANE}')
    I(f's_lshl_b32 s{sTMP}, s{sWAVE}, 5'); I(f's_add_u32 s{sTMP}, s{sTMP}, s{sR0}')
    I(f'v_add_u32 v{vT+1}, s{sTMP}, v{vT+1}')
    I(f'v_mul_u32_u24 v{vT+1}, 1280, v{vT+1}')
    I(f'v_lshrrev_b32 v{vT+2}, 4, v{vLANE}')
    I(f'v_and_b32 v{vT+3}, 7, v{vLANE}')
    for j in range(4):
        I(f'v_xor_b32 v{vT+4}, v{vT+2}, v{vT+3}')
        if j & 1: I(f'v_xor_b32 v{vT+4}, 4, v{vT+4}')
        I(f'v_lshl_add_u32 v{vXOFF+j}, v{vT+4}, 4, v{vT+1}')
        if j: I(f'v_add_u32 v{vXOFF+j}, {8*j*1280}, v{vXOFF+j}')
    C('W DMA voffset: k = 8w + (l>>3) ; piece = (l&7) ^ ((k&3)*2)')
    I(f'v_lshrrev_b32 v{vT+1}, 3, v{vLANE}')
    I(f'v_and_b32 v{vT+2}, 3, v{vT+1}'); I(f'v_lshlrev_b32 v{vT+2}, 1, v{vT+2}')
    I(f'v_xor_b32 v{vT+2}, v{vT+2}, v{vT+3}')
    I(f's_lshl_b32 s{sTMP}, s{sWAVE}, 3')
    I(f'v_add_u32 v{vT+1}, s{sTMP}, v{vT+1}')
    I(f'v_mul_u32_u24 v{vT+1}, {DF*2}, v{vT+1}')
    I(f'v_lshl_add_u32 v{vWOFF}, v{vT+2}, 4, v{vT+1}')
    I(f's_lshl_b32 s{sTMP}, s{sN0}, 1')
    I(f'v_add_u32 v{vWOFF}, s{sTMP}, v{vWOFF}')
    C('B frag read base: row = 64wr + 32rt + (l&31); slot = (2s + (l>>5)) ^ ((row>>1)&7)  -> handled per K step')
    I(f'v_and_b32 v{vT}, 31, v{vLANE}')
    I(f's_lshl_b32 s{sTMP}, s{sWR}, 6')
    I(f'v_add_u32 v{vT}, s{sTMP}, v{vT}')
    I(f'v_lshrrev_b32 v{vT+1}, 1, v{vT}'); I(f'v_and_b32 v{vT+1}, 7, v{vT+1}')
    I(f'v_lshrrev_b32 v{vT+2}, 5, v{vLANE}')
    I(f'v_xor_b32 v{vT+1}, v{vT+1}, v{vT+2}')
    I(f'v_lshlrev_b32 v{vT+1}, 4, v{vT+1}')
    I(f'v_lshl_add_u32 v{vXRD}, v{vT}, 7, v{vT+1}')
    C('A frag tr base: g=l>>4,i=l&15: k = (g>>1)*8 + (i>>2); byte = 64wc... + (g&1)*32 + (i&3)*8 ; piece ^= (k&3)*2')
    I(f'v_and_b32 v{vT}, 15, v{vLANE}'); I(f'v_lshrrev_b32 v{vT+1}, 4, v{vLANE}')
    I(f'v_lshrrev_b32 v{vT+2}, 1, v{vT+1}'); I(f'v_lshlrev_b32 v{vT+2}, 3, v{vT+2}')
    I(f'v_lshrrev_b32 v{vT+3}, 2, v{vT}'); I(f'v_add_u32 v{vT+2}, v{vT+2}, v{vT+3}')
    I(f'v_and_b32 v{vT+3}, 1, v{vT+1}'); I(f'v_lshlrev_b32 v{vT+3}, 5, v{vT+3}')
    I(f'v_and_b32 v{vT+4}, 3, v{vT}'); I(f'v_lshl_add_u32 v{vT+3}, v{vT+4}, 3, v{vT+3}')
    I(f's_lshl_b32 s{sTMP}, s{sWC}, 6')
    I(f'v_add_u32 v{vT+3}, s{sTMP}, v{vT+3}')
    k._g3 = dict(vk=vT+2, vbyte=vT+3)
    C('two address regs: first (k) and second (k+4) reads, swizzled')
    for idx, kadd in ((0, 0), (1, 4)):
        I(f'v_add_u32 v{vT+5}, {kadd}, v{vT+2}')
        I(f'v_and_b32 v{vT+6}, 3, v{vT+5}'); I(f'v_lshlrev_b32 v{vT+6}, 5, v{vT+6}')
        I(f'v_xor_b32 v{vT+6}, v{vT+6}, v{vT+3}')
        I(f'v_lshl_add_u32 v{vWRD+idx}, v{vT+5}, 7, v{vT+6}')
        I(f'v_add_u32 v{vWRD+idx}, {G3_XB}, v{vWRD+idx}')
    I(f'v_mov_b32 v{vE+40}, 0x3f803f80')
    vONE2 = vE + 40
    I(f'v_mov_b32 v{vCS}, 0'); I(f'v_mov_b32 v{vCS+1}, 0')
    for r in range(64): I(f'v_mov_b32 v{vACC+r}, 0')
    I(f's_mov_b32 s{sKX}, 0'); I(f's_mov_b32 s{sKW}, 0')

    def dma_stage(slot):
        base = slot * G3_STAGE
        for j in range(4):
            I(f's_lshl_b32 s{sTMP}, s{sWAVE}, 12'); I(f's_add_u32 m0, s{sTMP}, {base + j*1024}')
            I(f'buffer_load_dwordx4 v{vXOFF+j}, s[{sX}:{sX+3}], s{sKX} offen lds')
        for gu, sr in enumerate((sG, sU)):
            I(f's_lshl_b32 s{sTMP}, s{sWAVE}, 10'); I(f's_add_u32 m0, s{sTMP}, {base + G3_XB + gu*G3_WB}')
            I(f'buffer_load_dwordx4 v{vWOFF}, s[{sr}:{sr+3}], s{sKW} offen lds')
        I(f's_add_u32 s{sKX}, s{sKX}, 128'); I(f's_add_u32 s{sKW}, s{sKW}, {64*DF*2}')

    NSTAGE = D // 64
    dma_stage(0); dma_stage(1)
    stamp(k, 1)
    def reads(set_, slot, ks):
        for rt in range(2):
            b = bf(set_, rt)
            I(f'ds_read_b128 v[{b}:{b+3}], v{vXA+(ks&1)} offset:{rt*4096}')
        for gu in range(2):
            b = af(set_, gu)
            I(f'ds_read_b64_tr_b16 v[{b}:{b+1}], v{vWA} offset:{gu*G3_WB + ks*2048}')
            I(f'ds_read_b64_tr_b16 v[{b+2}:{b+3}], v{vWA+1} offset:{gu*G3_WB + ks*2048}')
    for st_ in range(NSTAGE):
        slot = st_ % G3_NS
        C(f'stage {st_}')
        I(f's_waitcnt vmcnt({6 if st_ + 1 < NSTAGE else 0})' if st_ > 0 else f's_waitcnt vmcnt(6)')
        I('s_barrier')
        if st_ + 2 < NSTAGE: dma_stage((st_ + 2) % G3_NS)
        I(f'v_add_u32 v{vXS}, {slot * G3_STAGE}, v{vXRD}')
        I(f'v_add_u32 v{vWA}, {slot * G3_STAGE}, v{vWRD}')
        I(f'v_add_u32 v{vWA+1}, {slot * G3_STAGE}, v{vWRD+1}')
        def issue(ks):
            I(f'v_xor_b32 v{vXA+(ks&1)}, {ks*32}, v{vXS}')
            reads(ks & 1, slot, ks)
        issue(0)
        for ks in range(4):
            set_ = ks & 1
            if ks + 1 < 4:
                issue(ks + 1); I('s_waitcnt lgkmcnt(6)')
            else:
                I('s_waitcnt lgkmcnt(0)')
            for gu in range(2):
                for rt in range(2):
                    a = af(set_, gu); b = bf(set_, rt)
                    I(f'v_mfma_f32_32x32x16_bf16 {acc(gu,rt)}, v[{a}:{a+3}], v[{b}:{b+3}], {acc(gu,rt)}')
                a = af(set_, gu)
                for j in range(4):
                    I(f'v_dot2_f32_bf16 v{vCS+gu}, v{a+j}, v{vONE2}, v{vCS+gu}')
    stamp(k, 2)
    C('row stats')
    vMEAN, vRDEN = vE, vE + 2
    for rt in range(2):
        b = vSTL + rt * 16
        for q in range(1, 8):
            I(f'v_add_f32 v{b}, v{b}, v{b+2*q}'); I(f'v_add_f32 v{b+1}, v{b+1}, v{b+2*q+1}')
        ln_scalars(I, b, b + 1, vMEAN + rt, vRDEN + rt, vE + 4)
    C('column sums: reduce lanes l,l^32 then permute to D layout via LDS (wave private region)')
    I('s_barrier')
    for gu in range(2):
        I(f'v_mov_b32 v{vE+4}, v{vCS+gu}')
        I(f'v_permlane32_swap_b32 v{vCS+gu}, v{vE+4}')
        I(f'v_add_f32 v{vCS+gu}, v{vCS+gu}, v{vE+4}')
    I(f's_lshl_b32 s{sTMP}, s{sWAVE}, 8')
    I(f'v_lshlrev_b32 v{vE+4}, 2, v{vLANE}'); I(f'v_add_u32 v{vE+4}, s{sTMP}, v{vE+4}')
    I(f'ds_write_b32 v{vE+4}, v{vCS}'); I(f'ds_write_b32 v{vE+4}, v{vCS+1} offset:2048')
    I(f'v_lshrrev_b32 v{vE+5}, 5, v{vLANE}'); I(f'v_lshlrev_b32 v{vE+5}, 4, v{vE+5}')
    I(f'v_add_u32 v{vE+5}, s{sTMP}, v{vE+5}')
    I('s_waitcnt lgkmcnt(0)')
    vCG, vCU = vE + 8, vE + 24
    for q in range(4):
        I(f'ds_read_b128 v[{vCG+4*q}:{vCG+4*q+3}], v{vE+5} offset:{q*32}')
        I(f'ds_read_b128 v[{vCU+4*q}:{vCU+4*q+3}], v{vE+5} offset:{2048 + q*32}')
    C('output addresses')
    I(f'v_and_b32 v{vT}, 31, v{vLANE}')
    I(f's_lshl_b32 s{sTMP}, s{sWR}, 6'); I(f's_add_u32 s{sTMP}, s{sTMP}, s{sR0}')
    I(f'v_add_u32 v{vT}, s{sTMP}, v{vT}')
    I(f's_mov_b32 s{sTMP}, {DF*2}')
    I(f'v_mul_lo_u32 v{vT}, v{vT}, s{sTMP}')
    I(f'v_lshrrev_b32 v{vT+1}, 5, v{vLANE}')
    I(f'v_lshl_add_u32 v{vT}, v{vT+1}, 3, v{vT}')
    I(f's_lshl_b32 s{sTMP}, s{sWC}, 5'); I(f's_add_u32 s{sTMP}, s{sTMP}, s{sN0}'); I(f's_lshl_b32 s{sTMP}, s{sTMP}, 1')
    I(f'v_add_u32 v{vT}, s{sTMP}, v{vT}')
    I(f'v_add_u32 v{vT+1}, {32*DF*2}, v{vT}')
    c0 = -2.0 * 1.4426950408889634 * 0.7978845608028654
    I(f'v_mov_b32 v{vT+2}, {f32bits(c0):#x}'); I(f'v_mov_b32 v{vT+3}, {f32bits(c0*0.044715):#x}')
    I('s_waitcnt lgkmcnt(0)')
    for rt in range(2):
        for r in range(16):
            g = vACC + rt * 16 + r; u = vACC + 32 + rt * 16 + r
            I(f'v_fma_f32 v{g}, -v{vMEAN+rt}, v{vCG+r}, v{g}')
            I(f'v_mul_f32 v{g}, v{g}, v{vRDEN+rt}')
            I(f'v_fma_f32 v{u}, -v{vMEAN+rt}, v{vCU+r}, v{u}')
            I(f'v_mul_f32 v{u}, v{u}, v{vRDEN+rt}')
            I(f'v_mul_f32 v{vT+4}, v{g}, v{g}')
            I(f'v_fma_f32 v{vT+4}, v{vT+4}, v{vT+3}, v{vT+2}')
            I(f'v_mul_f32 v{vT+4}, v{vT+4}, v{g}')
            I(f'v_exp_f32 v{vT+4}, v{vT+4}')
            I(f'v_add_f32 v{vT+4}, 1.0, v{vT+4}')
            I(f'v_rcp_f32 v{vT+4}, v{vT+4}')
            I(f'v_mul_f32 v{g}, v{g}, v{vT+4}')
            I(f'v_mul_f32 v{g}, v{g}, v{u}')
        for q in range(4):
            b = vACC + rt * 16 + 4 * q
            I(f'v_cvt_pk_bf16_f32 v{vE+4}, v{b}, v{b+1}'); I(f'v_cvt_pk_bf16_f32 v{vE+5}, v{b+2}, v{b+3}')
            I(f'buffer_store_dwordx2 v[{vE+4}:{vE+5}], v{vT+rt}, s[{sH}:{sH+3}], 0 offen offset:{q*16}')
    stamp(k, 3)
    stamp_flush(k, 4, sP)
    k.L(END)
    I('s_endpgm')
    return k
```
